```python
import torch

def _softmax(x, axis=-1):
    return torch.softmax(x, dim=axis)
def _gelu(x):
    return torch.nn.functional.gelu(x, approximate="tanh")
def _silu(x):
    return torch.nn.functional.silu(x)
def _sigmoid(x):
    return torch.sigmoid(x)
def _layernorm(x, axis=-1, eps=1e-5):
    m = x.mean(dim=axis, keepdim=True)
    v = x.var(dim=axis, keepdim=True, unbiased=False)
    return (x - m) / torch.sqrt(v + eps)
def _scatter_add(tgt, idx, src, axis=0):
    return tgt.clone().index_add_(axis, idx, src)
def _segment_sum(src, seg, n):
    out = torch.zeros((n,) + src.shape[1:], dtype=src.dtype)
    return out.index_add_(0, seg, src)
def _pad(x, pw):
    flat = tuple(v for pair in reversed(pw) for v in pair)
    return torch.nn.functional.pad(x, flat)

kernel_name = 'standalone__geglu_ffn__sampling'

def setup_inputs():

    _w = (lambda a: (lambda t: t.to(torch.bfloat16) if t.is_floating_point() else t)(torch.as_tensor(a)))
    B, S, D, F = 32, 32, 1024, 3584
    return {
        "x": _w((lambda *s: torch.randn(*s, dtype=torch.bfloat16) * 0.05)(B, S, D)),
        "w_gate": _w((lambda *s: torch.randn(*s, dtype=torch.bfloat16) * 0.05)(D, F)),
        "w_up": _w((lambda *s: torch.randn(*s, dtype=torch.bfloat16) * 0.05)(D, F)),
        "w_down": _w((lambda *s: torch.randn(*s, dtype=torch.bfloat16) * 0.05)(F, D)),
    }

def reference(x, w_gate, w_up, w_down):
    return (_gelu(x @ w_gate) * (x @ w_up)) @ w_down
```

```python
KNAME = "standalone__geglu_ffn__sampling_kernel"

def header(launches):
    s = []
    if len(launches) == 1 and launches[0][0] == KNAME:
        k, g, b, l = launches[0]
        s.append(f"; @launch grid=({g},1,1) block=({b},1,1) lds={l}")
    else:
        for k, g, b, l in launches:
            s.append(f"; @launch kernel={k} grid=({g},1,1) block=({b},1,1) lds={l}")
    s.append('.amdgcn_target "amdgcn-amd-amdhsa--gfx950"')
    s.append(".text")
    return "\n".join(s) + "\n"

def kstart(name):
    return f".globl {name}\n.p2align 8\n.type {name},@function\n{name}:\n"

def kdesc(name, vgpr=512, sgpr=102, accum=256):
    return f""".amdhsa_kernel {name}
  .amdhsa_next_free_vgpr {vgpr}
  .amdhsa_next_free_sgpr {sgpr}
  .amdhsa_accum_offset {accum}
  .amdhsa_group_segment_fixed_size 0
  .amdhsa_kernarg_size 56
  .amdhsa_user_sgpr_count 2
  .amdhsa_user_sgpr_kernarg_segment_ptr 1
  .amdhsa_system_sgpr_workgroup_id_x 1
.end_amdhsa_kernel
"""

def rodata(descs):
    return '.section .rodata,"a"\n' + "".join(".p2align 6\n" + d for d in descs)
```

```python
import sys
from asmgen import *

HDR = open("standalone__geglu_ffn__sampling.s.ref").read().split("; Override launch")[0]

LOG2E = 1.4426950408889634
import struct
def fbits(x):
    return "0x%08x" % struct.unpack("<I", struct.pack("<f", x))[0]
C0 = -2.0 * 0.7978845608028654 * LOG2E
C1 = C0 * 0.044715

class Asm:
    def __init__(self):
        self.L = []
    def __call__(self, s):
        for line in s.split("\n"):
            self.L.append(line)
    def text(self):
        return "\n".join(self.L) + "\n"

def srd(A, d, b, size):
    A(f"s_mov_b32 s{d}, s{b}")
    A(f"s_and_b32 s{d+1}, s{b+1}, 0xffff")
    A(f"s_mov_b32 s{d+2}, {size}")
    A(f"s_mov_b32 s{d+3}, 0x20000")

def stamp(A, idx, en):
    if en:
        A(f"s_memtime s[{60+2*idx}:{61+2*idx}]")

def dump_stamps(A, n, en, base):
    if not en:
        return
    A("s_waitcnt lgkmcnt(0)")
    A("s_memrealtime s[90:91]")
    A("s_waitcnt lgkmcnt(0)")
    A("s_lshl_b32 s92, s2, 3")
    A("s_add_u32 s92, s92, s28")
    A("s_lshl_b32 s92, s92, 6")
    A(f"s_add_u32 s92, s92, {base}")
    A("v_mov_b32 v1, 0")
    A("s_mov_b64 exec, 1")
    for i in range(n):
        A(f"v_mov_b32 v2, s{60+2*i}")
        A(f"buffer_store_dword v2, v1, s[16:19], s92 offen offset:{4*i}")
    A("v_mov_b32 v2, s90")
    A(f"buffer_store_dword v2, v1, s[16:19], s92 offen offset:60")
    A("v_mov_b32 v2, s88")
    A(f"buffer_store_dword v2, v1, s[16:19], s92 offen offset:56")
    A("s_mov_b64 exec, -1")

def common_setup(A, nwg, tag, st):
    A(f"s_cmp_ge_u32 s2, {nwg}")
    A(f"s_cbranch_scc1 L_end{tag}")
    if st:
        A("s_memrealtime s[88:89]")
    stamp(A, 0, st)
    A("s_load_dwordx8 s[36:43], s[0:1], 0")
    A("s_load_dwordx4 s[44:47], s[0:1], 32")
    A("s_load_dwordx2 s[48:49], s[0:1], 48")
    A("v_lshrrev_b32 v1, 6, v0")
    A("v_and_b32 v0, 63, v0")
    A("s_and_b32 s29, s2, 7")
    A("s_lshr_b32 s30, s2, 3")
    A("v_readfirstlane_b32 s28, v1")

XB = 49152
HT2 = 458752
STB = 16 << 20

class LgkmQ:
    def __init__(self): self.q = []
    def issue(self, tag): self.q.append(tag)
    def need(self, A, tags):
        idx = max([i for i, t in enumerate(self.q) if t in tags], default=-1)
        if idx < 0: return
        n = len(self.q) - 1 - idx
        A(f"s_waitcnt lgkmcnt({min(n,15)})")
        self.q = self.q[idx+1:]
    def drain(self, A):
        A("s_waitcnt lgkmcnt(0)")
        self.q = []

def gen_g1(A, st, hflags=""):
    name = "g1_kernel"
    A(kstart(name))
    common_setup(A, 224, "1", st)
    A("s_mul_i32 s31, s30, 37")
    A("s_lshr_b32 s31, s31, 8")
    A("s_mul_i32 s32, s31, 7")
    A("s_sub_u32 s32, s30, s32")
    A("s_mul_i32 s33, s29, 7")
    A("s_add_u32 s32, s32, s33")
    A("s_cmp_ge_u32 s28, 4")
    A("s_cbranch_scc1 L_loader1")

    ACC = 128
    P = {0: (16, 48), 1: (32, 56)}
    vA, vB = 4, 8
    A("v_lshrrev_b32 v1, 4, v0")
    A("v_and_b32 v2, 1, v1")
    A("v_lshrrev_b32 v3, 5, v0")
    A("v_bfe_u32 v12, v0, 2, 2")
    A("v_lshlrev_b32 v13, 13, v2")
    A("v_lshl_add_u32 v14, v3, 3, v12")
    A("v_lshl_add_u32 v13, v14, 7, v13")
    A("v_and_b32 v14, 1, v0")
    A("v_lshlrev_b32 v14, 4, v14")
    A("v_add_u32 v13, v13, v14")
    A("v_bfe_u32 v14, v0, 1, 1")
    A("v_lshl_add_u32 v13, v14, 3, v13")
    A("v_lshrrev_b32 v14, 1, v12")
    A("v_lshl_add_u32 v14, v2, 1, v14")
    for j in range(4):
        A(f"v_xor_b32 v15, {j}, v14")
        A(f"v_lshl_add_u32 v{vA+j}, v15, 5, v13")
    A("s_mul_i32 s34, s28, 24576")
    A(f"s_add_u32 s34, s34, {XB}")
    A("v_and_b32 v12, 31, v0")
    A("v_lshlrev_b32 v12, 7, v12")
    A("v_add_u32 v12, s34, v12")
    A("v_bfe_u32 v13, v0, 1, 3")
    A("v_xor_b32 v13, v13, v3")
    for s in range(4):
        A(f"v_xor_b32 v15, {2*s}, v13")
        A(f"v_lshl_add_u32 v{vB+s}, v15, 4, v12")
    for r in range(128):
        A(f"v_mov_b32 v{ACC+r}, 0")
    A("s_waitcnt lgkmcnt(0)")
    srd(A, 16, 48, 0x10000000)
    A("s_lshl_b32 s34, s31, 2")
    A("s_add_u32 s34, s34, s28")
    A(f"s_mul_i32 s34, s34, {HT2}")
    A("s_lshl_b32 s35, s32, 13")
    A("s_add_u32 s34, s34, s35")
    A("s_add_u32 s35, s34, 4096")
    A("v_lshlrev_b32 v12, 4, v0")
    A("s_mov_b32 s50, 0")
    A("s_mov_b32 s51, 16")

    def reads(s, par):
        a0, b0 = P[par]
        R = []
        R.append((("B", 0, par), f"ds_read_b128 v[{b0}:{b0+3}], v{vB+s}"))
        for j in range(4):
            for t in range(2):
                R.append((("A", j, par), f"ds_read_b64_tr_b16 v[{a0+4*j+2*t}:{a0+4*j+2*t+1}], v{vA+j} offset:{2048*s+512*t}"))
            if j == 0:
                R.append((("B", 1, par), f"ds_read_b128 v[{b0+4}:{b0+7}], v{vB+s} offset:4096"))
        return R

    Q = LgkmQ()
    A("s_barrier")
    stamp(A, 1, st)
    if st:
        A("s_waitcnt lgkmcnt(0)")
    for tag, ins in reads(0, 0):
        A(ins); Q.issue(tag)
    A("L_cloop1:")
    q_entry = list(Q.q)
    for s in range(4):
        par = s & 1
        a0, b0 = P[par]
        R = reads((s + 1) & 3, par ^ 1)
        for m in range(8):
            i, j = m & 1, m >> 1
            Q.need(A, [("A", j, par), ("B", i, par)])
            c = ACC + 16 * (4 * i + j)
            A(f"v_mfma_f32_32x32x16_bf16 v[{c}:{c+15}], v[{a0+4*j}:{a0+4*j+3}], v[{b0+4*i}:{b0+4*i+3}], v[{c}:{c+15}]")
            if s == 2 and m == 5:
                A("s_add_u32 s50, s50, 1")
                A("s_cmp_eq_u32 s50, 3")
                A("s_cselect_b32 s53, -2, 1")
                A("s_cselect_b32 s50, 0, s50")
            if s == 2 and m == 6:
                A("s_lshl_b32 s52, s53, 14")
                A("s_lshl_b32 s53, s53, 13")
                for j2 in range(2):
                    A(f"v_add_u32 v{vA+j2}, s52, v{vA+j2}")
                A(f"v_add_u32 v{vB}, s53, v{vB}")
            if s == 2 and m == 7:
                for j2 in range(2, 4):
                    A(f"v_add_u32 v{vA+j2}, s52, v{vA+j2}")
                for s2 in range(1, 4):
                    A(f"v_add_u32 v{vB+s2}, s53, v{vB+s2}")
            if s == 3 and m == 0:
                Q.drain(A)
                A("s_barrier")
                continue
            n = 2
            for _ in range(n):
                if R:
                    tag, ins = R.pop(0)
                    A(ins); Q.issue(tag)
            if s == 3 and m == 6:
                A("s_sub_u32 s51, s51, 1")
                A("s_cmp_lg_u32 s51, 0")
    assert Q.q == q_entry, (Q.q, q_entry)
    A("s_cbranch_scc1 L_cloop1")
    stamp(A, 2, st)
    A("s_waitcnt lgkmcnt(0)")
    A(f"s_mov_b32 s52, {fbits(C0)}")
    A(f"s_mov_b32 s53, {fbits(C1)}")
    A("v_mov_b32 v13, s52")
    A("s_nop 7")
    for m in range(8):
        i, j = m & 1, m >> 1
        c = ACC + 16 * (4 * i + j)
        t0 = 16 + 16 * (m & 1)
        o = 64 + 4 * m
        for e in range(8):
            A(f"v_mul_f32 v{t0+e}, v{c+e}, v{c+e}")
        for e in range(8):
            A(f"v_fma_f32 v{t0+e}, v{t0+e}, s53, v13")
        for e in range(8):
            A(f"v_mul_f32 v{t0+e}, v{t0+e}, v{c+e}")
        for e in range(8):
            A(f"v_exp_f32 v{t0+e}, v{t0+e}")
        for e in range(8):
            A(f"v_mul_f32 v{t0+8+e}, v{c+e}, v{c+8+e}")
        for e in range(8):
            A(f"v_add_f32 v{t0+e}, 1.0, v{t0+e}")
        for e in range(8):
            A(f"v_rcp_f32 v{t0+e}, v{t0+e}")
        for e in range(8):
            A(f"v_mul_f32 v{t0+8+e}, v{t0+8+e}, v{t0+e}")
        for e in range(4):
            A(f"v_cvt_pk_bf16_f32 v{o+e}, v{t0+8+2*e}, v{t0+9+2*e}")
        off = 2048 * j + 1024 * i
        A(f"buffer_store_dwordx4 v[{o}:{o+3}], v12, s[16:19], s{34 + (off >> 12)} offen offset:{off & 4095} {hflags}")
    stamp(A, 3, st)
    A("s_waitcnt vmcnt(0)")
    stamp(A, 4, st)
    dump_stamps(A, 5, st, STB)
    A("s_waitcnt vmcnt(0)")
    A("s_endpgm")

    A("L_loader1:")
    A("s_sub_u32 s33, s28, 4")
    A("v_lshrrev_b32 v1, 3, v0")
    A("v_and_b32 v2, 7, v0")
    A("v_lshrrev_b32 v3, 4, v0")
    A("s_lshl_b32 s34, s31, 2")
    A("s_add_u32 s34, s34, s33")
    A("s_lshl_b32 s34, s34, 17")
    A("v_lshlrev_b32 v4, 11, v1")
    A("v_add_u32 v4, s34, v4")
    A("v_xor_b32 v5, v2, v3")
    A("v_xor_b32 v6, 4, v5")
    A("v_lshl_add_u32 v5, v5, 4, v4")
    A("v_lshl_add_u32 v6, v6, 4, v4")
    vX, vW = 8, 16
    for p in range(8):
        A(f"v_add_u32 v{vX+p}, {16384*p - 1024*(p&3)}, v{5 + (p&1)}")
    A("s_lshl_b32 s34, s33, 4")
    A("v_add_u32 v4, s34, v1")
    A("v_mul_u32_u24 v4, 7168, v4")
    A("s_lshl_b32 s34, s32, 7")
    A("v_add_u32 v4, s34, v4")
    A("v_and_b32 v3, 1, v3")
    A("v_lshlrev_b32 v3, 1, v3")
    A("v_xor_b32 v5, v2, v3")
    A("v_xor_b32 v6, 4, v5")
    A(f"v_lshl_add_u32 v{vW}, v5, 4, v4")
    A(f"v_lshl_add_u32 v{vW+2}, v6, 4, v4")
    A(f"v_add_u32 v{vW+1}, {8*7168-1024}, v{vW}")
    A(f"v_add_u32 v{vW+3}, {8*7168-1024}, v{vW+2}")
    A("s_mul_i32 s54, s33, 24576")
    A(f"s_add_u32 s54, s54, {XB}")
    A("s_lshl_b32 s55, s33, 11")
    A("s_mov_b32 s56, 0")
    A("s_mov_b32 s57, 0")
    A("s_mov_b32 s50, 0")
    A("s_waitcnt lgkmcnt(0)")
    srd(A, 4, 36, 2097152)
    srd(A, 8, 38, 7340032)
    srd(A, 12, 40, 7340032)
    if st:
        srd(A, 16, 48, 0x10000000)

    def issue():
        A("s_mov_b32 m0, s55")
        A("s_add_u32 s58, s55, 8192")
        A(f"buffer_load_dwordx4 v{vW}, s[8:11], s57 offen lds")
        A(f"buffer_load_dwordx4 v{vW+1}, s[8:11], s57 offen offset:1024 lds")
        A("s_mov_b32 m0, s58")
        A("s_add_u32 s58, s54, 4096")
        A(f"buffer_load_dwordx4 v{vW+2}, s[12:15], s57 offen lds")
        A(f"buffer_load_dwordx4 v{vW+3}, s[12:15], s57 offen offset:1024 lds")
        A("s_mov_b32 m0, s54")
        A("s_add_u32 s50, s50, 1")
        for p in range(4):
            A(f"buffer_load_dwordx4 v{vX+p}, s[4:7], s56 offen offset:{1024*p} lds")
        A("s_mov_b32 m0, s58")
        A("s_cmp_eq_u32 s50, 3")
        for p in range(4, 8):
            A(f"buffer_load_dwordx4 v{vX+p}, s[4:7], s56 offen offset:{1024*(p&3)} lds")
        A("s_cselect_b32 s53, -2, 1")
        A("s_cselect_b32 s50, 0, s50")
        A("s_lshl_b32 s52, s53, 14")
        A("s_lshl_b32 s53, s53, 13")
        A("s_add_u32 s55, s55, s52")
        A("s_add_u32 s54, s54, s53")
        A("s_add_u32 s56, s56, 128")
        A("s_add_u32 s57, s57, 458752")

    for c in range(3):
        issue()
    stamp(A, 1, st)
    A("s_waitcnt vmcnt(24)")
    stamp(A, 2, st)
    A("s_barrier")
    A("s_waitcnt vmcnt(12)")
    A("s_mov_b32 s51, 13")
    A("L_lloop1:")
    A("s_barrier")
    issue()
    A("s_sub_u32 s51, s51, 1")
    A("s_cmp_lg_u32 s51, 0")
    A("s_waitcnt vmcnt(12)")
    A("s_cbranch_scc1 L_lloop1")
    A("s_barrier")
    A("s_waitcnt vmcnt(0)")
    stamp(A, 3, st)
    A("s_barrier")
    A("s_barrier")
    stamp(A, 4, st)
    dump_stamps(A, 5, st, STB)
    A("s_waitcnt vmcnt(0)")
    A("L_end1:")
    A("s_endpgm")
    return kdesc(name, 256, 102, 256)

def gen_g2(A, st, D=8, hflags=""):
    name = "g2_kernel"
    A(kstart(name))
    common_setup(A, 256, "2", st)
    A("s_lshr_b32 s31, s29, 1")
    A("s_lshl_b32 s31, s31, 2")
    A("s_and_b32 s33, s30, 3")
    A("s_add_u32 s31, s31, s33")
    A("s_and_b32 s32, s29, 1")
    A("s_lshl_b32 s32, s32, 3")
    A("s_lshr_b32 s33, s30, 2")
    A("s_add_u32 s32, s32, s33")
    ACC = 192
    HB = 64
    FA = {0: 16, 1: 24}
    vH, vWd, vT = 4, 5, 7
    A(f"v_lshlrev_b32 v{vH}, 4, v0")
    A("v_lshrrev_b32 v1, 3, v0")
    A("v_and_b32 v2, 7, v0")
    A("v_bfe_u32 v3, v0, 4, 1")
    A("v_lshlrev_b32 v9, 2, v3")
    A("v_xor_b32 v2, v2, v9")
    A("v_lshlrev_b32 v1, 11, v1")
    A("v_lshl_add_u32 v1, v2, 4, v1")
    A("s_lshl_b32 s33, s32, 7")
    A(f"v_add_u32 v{vWd}, s33, v1")
    A(f"v_add_u32 v{vWd+1}, {8*2048-1024}, v{vWd}")
    A("v_lshrrev_b32 v1, 5, v0")
    A("v_bfe_u32 v2, v0, 2, 2")
    A("v_lshl_add_u32 v1, v1, 3, v2")
    A("v_lshlrev_b32 v1, 7, v1")
    A("v_and_b32 v9, 1, v0")
    A("v_lshl_add_u32 v9, v9, 1, v3")
    A("v_lshrrev_b32 v2, 1, v2")
    A("v_lshlrev_b32 v2, 2, v2")
    A("v_xor_b32 v9, v9, v2")
    A("v_lshl_add_u32 v1, v9, 4, v1")
    A("v_bfe_u32 v2, v0, 1, 1")
    A("v_lshl_add_u32 v1, v2, 3, v1")
    A("s_lshl_b32 s54, s28, 14")
    A(f"v_add_u32 v{vT}, s54, v1")
    A(f"v_xor_b32 v{vT+1}, 64, v{vT}")
    A(f"s_mul_i32 s56, s31, {HT2}")
    A(f"s_mul_i32 s33, s28, {28*2048}")
    A("s_add_u32 s56, s56, s33")
    A(f"s_mul_i32 s57, s28, {28*32768}")
    A("s_waitcnt lgkmcnt(0)")
    srd(A, 16, 48, 0x10000000)
    srd(A, 20, 42, 7340032)
    srd(A, 24, 44, 2097152)

    def issue(s):
        A(f"s_add_u32 m0, s54, {(s % D) * 2048}")
        hb = HB + 8 * (s % D)
        A(f"buffer_load_dwordx4 v[{hb}:{hb+3}], v{vH}, s[16:19], s56 offen {hflags}")
        A(f"buffer_load_dwordx4 v{vWd}, s[20:23], s57 offen lds")
        A(f"buffer_load_dwordx4 v{vWd+1}, s[20:23], s57 offen offset:1024 lds")
        A(f"buffer_load_dwordx4 v[{hb+4}:{hb+7}], v{vH}, s[16:19], s56 offen offset:1024 {hflags}")
        A("s_add_u32 s56, s56, 2048")
        A("s_add_u32 s57, s57, 32768")

    def trs(s):
        f = FA[s & 1]
        for a in range(2):
            for t in range(2):
                A(f"ds_read_b64_tr_b16 v[{f+4*a+2*t}:{f+4*a+2*t+1}], v{vT+a} offset:{(s % D)*2048 + 512*t}")

    NS = 28
    for s in range(D - 1):
        issue(s)
    stamp(A, 1, st)
    for r in range(64):
        A(f"v_mov_b32 v{ACC+r}, 0")
    A(f"s_waitcnt vmcnt({4*(D-2)})")
    stamp(A, 2, st)
    trs(0)
    for s in range(NS):
        issued = min(NS, s + D - 1)
        if s + 1 < NS:
            A(f"s_waitcnt vmcnt({4*(issued - (s+2))}) lgkmcnt(0)")
            trs(s + 1)
        else:
            A("s_waitcnt lgkmcnt(0)")
        f = FA[s & 1]
        hb = HB + 8 * (s % D)
        for a in range(2):
            for i in range(2):
                c = ACC + 16 * (2 * a + i)
                A(f"v_mfma_f32_32x32x16_bf16 v[{c}:{c+15}], v[{f+4*a}:{f+4*a+3}], v[{hb+4*i}:{hb+4*i+3}], v[{c}:{c+15}]")
            if a == 0 and s + D - 1 < NS:
                issue(s + D - 1)
    stamp(A, 3, st)
    QS, HS, RS = 1088, 576, 17408
    A("v_and_b32 v1, 31, v0")
    A("v_lshrrev_b32 v2, 5, v0")
    A(f"v_mul_u32_u24 v2, {HS}, v2")
    A("v_lshl_add_u32 v1, v1, 4, v2")
    A(f"s_mul_i32 s33, s28, {RS}")
    A("v_add_u32 v1, s33, v1")
    A("v_lshrrev_b32 v2, 3, v0")
    A("v_bfe_u32 v3, v0, 2, 1")
    A(f"v_mul_u32_u24 v3, {8*QS}, v3")
    A("v_bfe_u32 v9, v0, 1, 1")
    A(f"v_mul_u32_u24 v9, {HS}, v9")
    A("v_add_u32 v3, v3, v9")
    A("v_and_b32 v9, 1, v0")
    A(f"v_mul_u32_u24 v9, {2*QS}, v9")
    A("v_add_u32 v3, v3, v9")
    A("v_lshl_add_u32 v3, v2, 4, v3")
    A("s_lshr_b32 s33, s28, 2")
    A(f"s_mul_i32 s33, s33, {4*QS}")
    A("s_and_b32 s34, s28, 3")
    A("s_lshl_b32 s34, s34, 7")
    A("s_add_u32 s33, s33, s34")
    A("v_add_u32 v3, s33, v3")
    A(f"v_add_u32 v9, {4*RS}, v3")
    A("s_barrier")
    for q in range(16):
        A(f"ds_write_b128 v1, v[{ACC+4*q}:{ACC+4*q+3}] offset:{q*QS}")
    A("s_lshl_b32 s33, s31, 6")
    A("s_lshl_b32 s34, s28, 3")
    A("s_add_u32 s33, s33, s34")
    A("s_lshl_b32 s33, s33, 11")
    A("s_lshl_b32 s34, s32, 7")
    A("s_add_u32 s33, s33, s34")
    A("v_and_b32 v10, 7, v0")
    A("v_lshlrev_b32 v10, 4, v10")
    A("v_lshl_add_u32 v10, v2, 11, v10")
    A("s_waitcnt lgkmcnt(0)")
    A("s_barrier")
    for src in range(8):
        va = 3 if src < 4 else 9
        for g in range(2):
            r = HB + 8 * src + 4 * g
            A(f"ds_read_b128 v[{r}:{r+3}], v{va} offset:{(src & 3)*RS + g*QS}")
    for src in range(1, 8):
        A(f"s_waitcnt lgkmcnt({14 - 2*src})")
        for e in range(8):
            A(f"v_add_f32 v{HB+e}, v{HB+e}, v{HB+8*src+e}")
    for e in range(4):
        A(f"v_cvt_pk_bf16_f32 v{16+e}, v{HB+2*e}, v{HB+2*e+1}")
    A("buffer_store_dwordx4 v[16:19], v10, s[24:27], s33 offen")
    stamp(A, 4, st)
    A("s_waitcnt vmcnt(0)")
    stamp(A, 5, st)
    dump_stamps(A, 6, st, STB + 256 * 512)
    A("s_waitcnt vmcnt(0)")
    A("L_end2:")
    A("s_endpgm")
    return kdesc(name, 256, 102, 256)

def gen(st=False, D=8, sflags="", lflags=""):
    A = Asm()
    A(HDR.rstrip("\n"))
    A(header([("g1_kernel", 224, 512, 147456), ("g2_kernel", 256, 512, 139264)]).rstrip("\n"))
    d1 = gen_g1(A, st, sflags)
    d2 = gen_g2(A, st, D, lflags)
    A(rodata([d1, d2]))
    return A.text()

if __name__ == "__main__":
    open("v1.s", "w").write(gen())
    open("v1_st.s", "w").write(gen(st=True))
    open("v1_sc1.s", "w").write(gen(sflags="sc1"))
    open("v1_sc1_st.s", "w").write(gen(st=True, sflags="sc1"))
```

```python
import sys
from asmgen import *

HDR = open("standalone__geglu_ffn__sampling.s.ref").read().split("; Override launch")[0]

LOG2E = 1.4426950408889634
import struct
def fbits(x):
    return "0x%08x" % struct.unpack("<I", struct.pack("<f", x))[0]
C0 = -2.0 * 0.7978845608028654 * LOG2E
C1 = C0 * 0.044715

class Asm:
    def __init__(self):
        self.L = []
    def __call__(self, s):
        for line in s.split("\n"):
            self.L.append(line)
    def text(self):
        return "\n".join(self.L) + "\n"

def srd(A, d, b, size):
    A(f"s_mov_b32 s{d}, s{b}")
    A(f"s_and_b32 s{d+1}, s{b+1}, 0xffff")
    A(f"s_mov_b32 s{d+2}, {size}")
    A(f"s_mov_b32 s{d+3}, 0x20000")

def stamp(A, idx, en):
    if en:
        A(f"s_memtime s[{60+2*idx}:{61+2*idx}]")

def dump_stamps(A, n, en, base):
    if not en:
        return
    A("s_waitcnt lgkmcnt(0)")
    A("s_memrealtime s[90:91]")
    A("s_waitcnt lgkmcnt(0)")
    A("s_lshl_b32 s92, s2, 3")
    A("s_add_u32 s92, s92, s28")
    A("s_lshl_b32 s92, s92, 6")
    A(f"s_add_u32 s92, s92, {base}")
    A("v_mov_b32 v1, 0")
    A("s_mov_b64 exec, 1")
    for i in range(n):
        A(f"v_mov_b32 v2, s{60+2*i}")
        A(f"buffer_store_dword v2, v1, s[16:19], s92 offen offset:{4*i}")
    A("v_mov_b32 v2, s90")
    A(f"buffer_store_dword v2, v1, s[16:19], s92 offen offset:60")
    A("v_mov_b32 v2, s88")
    A(f"buffer_store_dword v2, v1, s[16:19], s92 offen offset:56")
    A("s_mov_b64 exec, -1")

def common_setup(A, nwg, tag, st):
    A(f"s_cmp_ge_u32 s2, {nwg}")
    A(f"s_cbranch_scc1 L_end{tag}")
    if st:
        A("s_memrealtime s[88:89]")
    stamp(A, 0, st)
    A("s_load_dwordx8 s[36:43], s[0:1], 0")
    A("s_load_dwordx4 s[44:47], s[0:1], 32")
    A("s_load_dwordx2 s[48:49], s[0:1], 48")
    A("v_lshrrev_b32 v1, 6, v0")
    A("v_and_b32 v0, 63, v0")
    A("s_and_b32 s29, s2, 7")
    A("s_lshr_b32 s30, s2, 3")
    A("v_readfirstlane_b32 s28, v1")

XB = 49152
HT2 = 458752
STB = 16 << 20

class LgkmQ:
    def __init__(self): self.q = []
    def issue(self, tag): self.q.append(tag)
    def need(self, A, tags):
        idx = max([i for i, t in enumerate(self.q) if t in tags], default=-1)
        if idx < 0: return
        n = len(self.q) - 1 - idx
        A(f"s_waitcnt lgkmcnt({min(n,15)})")
        self.q = self.q[idx+1:]
    def drain(self, A):
        A("s_waitcnt lgkmcnt(0)")
        self.q = []

def g1_compute16(A, st, hflags, order=0, pk=0):
    ACC = 128
    PA = {0: 16, 1: 48}
    PB = {0: 80, 1: 96}
    vA, vB = 4, 8
    A("v_lshrrev_b32 v1, 4, v0")
    A("v_bfe_u32 v2, v0, 2, 2")
    A("v_lshl_add_u32 v2, v1, 3, v2")
    A("v_lshlrev_b32 v2, 7, v2")
    A("v_and_b32 v3, 3, v0")
    A("v_lshl_add_u32 v2, v3, 3, v2")
    A("v_bfe_u32 v3, v0, 3, 2")
    for j in range(4):
        A(f"v_xor_b32 v15, {j}, v3")
        A(f"v_lshl_add_u32 v{vA+j}, v15, 5, v2")
    A("s_mul_i32 s34, s28, 24576")
    A(f"s_add_u32 s34, s34, {XB}")
    A("v_and_b32 v12, 15, v0")
    A("v_lshlrev_b32 v12, 7, v12")
    A("v_add_u32 v12, s34, v12")
    A("v_bfe_u32 v13, v0, 1, 3")
    A("v_xor_b32 v13, v13, v1")
    A(f"v_lshl_add_u32 v{vB}, v13, 4, v12")
    A(f"v_xor_b32 v{vB+1}, 64, v{vB}")
    for r in range(128):
        A(f"v_mov_b32 v{ACC+r}, 0")
    A("s_waitcnt lgkmcnt(0)")
    srd(A, 16, 48, 0x10000000)
    A("s_lshl_b32 s34, s31, 2")
    A("s_add_u32 s34, s34, s28")
    A(f"s_mul_i32 s34, s34, {4*114688}")
    A("s_lshl_b32 s35, s32, 11")
    A("s_add_u32 s34, s34, s35")
    A("v_lshlrev_b32 v12, 4, v0")
    A("s_mov_b32 s50, 0")
    A("s_mov_b32 s51, 16")
    acc = lambda j, i: ACC + 64 * (j >> 2) + 16 * i + 4 * (j & 3)

    def reads(s):
        a0, b0 = PA[s], PB[s]
        RA = lambda j: [(("A", j, s), f"ds_read_b64_tr_b16 v[{a0+4*j+2*t}:{a0+4*j+2*t+1}], v{vA+(j&3)} offset:{8192*(j>>2)+4096*s+512*t}") for t in range(2)]
        RB = lambda i: [(("B", i, s), f"ds_read_b128 v[{b0+4*i}:{b0+4*i+3}], v{vB+s} offset:{2048*i}")]
        if order == 0:
            R = RA(0) + RB(0) + RB(1) + RB(2) + RB(3)
            for j in range(1, 8): R += RA(j)
        else:
            R = RB(0)
            for j in range(8): R += RA(j)
            R += RB(1) + RB(2) + RB(3)
        return R

    Q = LgkmQ()
    A("s_barrier")
    stamp(A, 1, st)
    if st:
        A("s_waitcnt lgkmcnt(0)")
    for tag, ins in reads(0):
        A(ins); Q.issue(tag)
    Q.drain(A)
    A("L_cloop1:")
    for s in range(2):
        a0, b0 = PA[s], PB[s]
        R = reads(s ^ 1)
        for m in range(32):
            if order == 0:
                j, i = m >> 2, m & 3
                if j & 1: i = 3 - i
            else:
                i, j = m >> 3, m & 7
                if i & 1: j = 7 - j
            c = acc(j, i)
            A(f"v_mfma_f32_16x16x32_bf16 v[{c}:{c+3}], v[{a0+4*j}:{a0+4*j+3}], v[{b0+4*i}:{b0+4*i+3}], v[{c}:{c+3}]")
            if s == 0:
                ex = {21: ["s_add_u32 s50, s50, 1", "s_cmp_eq_u32 s50, 3"],
                      22: ["s_cselect_b32 s53, -2, 1", "s_cselect_b32 s50, 0, s50"],
                      23: ["s_lshl_b32 s52, s53, 14", "s_lshl_b32 s53, s53, 13"],
                      24: [f"v_add_u32 v{vA}, s52, v{vA}"], 25: [f"v_add_u32 v{vA+1}, s52, v{vA+1}"],
                      26: [f"v_add_u32 v{vA+2}, s52, v{vA+2}"], 27: [f"v_add_u32 v{vA+3}, s52, v{vA+3}"],
                      28: [f"v_add_u32 v{vB}, s53, v{vB}"], 29: [f"v_add_u32 v{vB+1}, s53, v{vB+1}"],
                      30: ["s_waitcnt lgkmcnt(0)"], 31: ["s_barrier"]}
            else:
                ex = {28: ["s_sub_u32 s51, s51, 1", "s_cmp_lg_u32 s51, 0"], 30: ["s_waitcnt lgkmcnt(0)"]}
            if R:
                A(R.pop(0)[1])
            for e in ex.get(m, []):
                A(e)
    A("s_cbranch_scc1 L_cloop1")
    stamp(A, 2, st)
    A("s_waitcnt lgkmcnt(0)")
    A(f"s_mov_b32 s52, {fbits(C0)}")
    A(f"s_mov_b32 s54, {fbits(C1)}")
    A(f"s_mov_b32 s55, {fbits(C1)}")
    A("v_mov_b32 v14, s52")
    A("v_mov_b32 v15, s52")
    A("s_nop 7")
    for m in range(8):
        i, q = m >> 1, m & 1
        c = acc(2 * q, i)
        u = c + 64
        t0 = 16 + 16 * (m & 1)
        o = 64 + 4 * m
        if pk:
            P = lambda r: f"v[{r}:{r+1}]"
            for e in range(0, 8, 2):
                A(f"v_pk_mul_f32 {P(t0+e)}, {P(c+e)}, {P(c+e)}")
            for e in range(0, 8, 2):
                A(f"v_pk_fma_f32 {P(t0+e)}, {P(t0+e)}, s[54:55], v[14:15]")
            for e in range(0, 8, 2):
                A(f"v_pk_mul_f32 {P(t0+e)}, {P(t0+e)}, {P(c+e)}")
            for e in range(8):
                A(f"v_exp_f32 v{t0+e}, v{t0+e}")
                if e & 1:
                    A(f"v_pk_mul_f32 {P(t0+7+e)}, {P(c+e-1)}, {P(u+e-1)}")
            for e in range(0, 8, 2):
                A(f"v_pk_add_f32 {P(t0+e)}, {P(t0+e)}, 1.0 op_sel_hi:[1,0]")
            for e in range(8):
                A(f"v_rcp_f32 v{t0+e}, v{t0+e}")
            for e in range(0, 8, 2):
                A(f"v_pk_mul_f32 {P(t0+8+e)}, {P(t0+8+e)}, {P(t0+e)}")
        else:
            for e in range(8):
                A(f"v_mul_f32 v{t0+e}, v{c+e}, v{c+e}")
            for e in range(8):
                A(f"v_fma_f32 v{t0+e}, v{t0+e}, s54, v14")
            for e in range(8):
                A(f"v_mul_f32 v{t0+e}, v{t0+e}, v{c+e}")
            for e in range(8):
                A(f"v_exp_f32 v{t0+e}, v{t0+e}")
            for e in range(8):
                A(f"v_mul_f32 v{t0+8+e}, v{c+e}, v{u+e}")
            for e in range(8):
                A(f"v_add_f32 v{t0+e}, 1.0, v{t0+e}")
            for e in range(8):
                A(f"v_rcp_f32 v{t0+e}, v{t0+e}")
            for e in range(8):
                A(f"v_mul_f32 v{t0+8+e}, v{t0+8+e}, v{t0+e}")
        for e in range(4):
            A(f"v_cvt_pk_bf16_f32 v{o+e}, v{t0+8+2*e}, v{t0+9+2*e}")
        A(f"buffer_store_dwordx4 v[{o}:{o+3}], v12, s[16:19], s34 offen offset:{1024*q} {hflags}")
        if q:
            A("s_add_u32 s34, s34, 114688")
    stamp(A, 3, st)
    A("s_waitcnt vmcnt(0)")
    stamp(A, 4, st)
    dump_stamps(A, 5, st, STB)
    A("s_waitcnt vmcnt(0)")
    A("s_endpgm")

def g1_compute32(A, st, hflags):
    ACC = 128
    P = {0: (16, 48), 1: (32, 56)}
    vA, vB = 4, 8
    A("v_lshrrev_b32 v1, 4, v0")
    A("v_and_b32 v2, 1, v1")
    A("v_lshrrev_b32 v3, 5, v0")
    A("v_bfe_u32 v12, v0, 2, 2")
    A("v_lshlrev_b32 v13, 13, v2")
    A("v_lshl_add_u32 v14, v3, 3, v12")
    A("v_lshl_add_u32 v13, v14, 7, v13")
    A("v_and_b32 v14, 1, v0")
    A("v_lshlrev_b32 v14, 4, v14")
    A("v_add_u32 v13, v13, v14")
    A("v_bfe_u32 v14, v0, 1, 1")
    A("v_lshl_add_u32 v13, v14, 3, v13")
    A("v_lshrrev_b32 v14, 1, v12")
    A("v_lshl_add_u32 v14, v2, 1, v14")
    for j in range(4):
        A(f"v_xor_b32 v15, {j}, v14")
        A(f"v_lshl_add_u32 v{vA+j}, v15, 5, v13")
    A("s_mul_i32 s34, s28, 24576")
    A(f"s_add_u32 s34, s34, {XB}")
    A("v_and_b32 v12, 31, v0")
    A("v_lshlrev_b32 v12, 7, v12")
    A("v_add_u32 v12, s34, v12")
    A("v_bfe_u32 v13, v0, 1, 3")
    A("v_xor_b32 v13, v13, v3")
    for s in range(4):
        A(f"v_xor_b32 v15, {2*s}, v13")
        A(f"v_lshl_add_u32 v{vB+s}, v15, 4, v12")
    for r in range(128):
        A(f"v_mov_b32 v{ACC+r}, 0")
    A("s_waitcnt lgkmcnt(0)")
    srd(A, 16, 48, 0x10000000)
    A("s_lshl_b32 s34, s31, 2")
    A("s_add_u32 s34, s34, s28")
    A(f"s_mul_i32 s34, s34, {HT2}")
    A("s_lshl_b32 s35, s32, 13")
    A("s_add_u32 s34, s34, s35")
    A("s_add_u32 s35, s34, 4096")
    A("v_lshlrev_b32 v12, 4, v0")
    A("s_mov_b32 s50, 0")
    A("s_mov_b32 s51, 16")

    def reads(s, par):
        a0, b0 = P[par]
        R = []
        R.append((("B", 0, par), f"ds_read_b128 v[{b0}:{b0+3}], v{vB+s}"))
        for j in range(4):
            for t in range(2):
                R.append((("A", j, par), f"ds_read_b64_tr_b16 v[{a0+4*j+2*t}:{a0+4*j+2*t+1}], v{vA+j} offset:{2048*s+512*t}"))
            if j == 0:
                R.append((("B", 1, par), f"ds_read_b128 v[{b0+4}:{b0+7}], v{vB+s} offset:4096"))
        return R

    Q = LgkmQ()
    A("s_barrier")
    stamp(A, 1, st)
    if st:
        A("s_waitcnt lgkmcnt(0)")
    for tag, ins in reads(0, 0):
        A(ins); Q.issue(tag)
    A("L_cloop1:")
    q_entry = list(Q.q)
    for s in range(4):
        par = s & 1
        a0, b0 = P[par]
        R = reads((s + 1) & 3, par ^ 1)
        for m in range(8):
            i, j = m & 1, m >> 1
            Q.need(A, [("A", j, par), ("B", i, par)])
            c = ACC + 16 * (4 * i + j)
            A(f"v_mfma_f32_32x32x16_bf16 v[{c}:{c+15}], v[{a0+4*j}:{a0+4*j+3}], v[{b0+4*i}:{b0+4*i+3}], v[{c}:{c+15}]")
            if s == 2 and m == 5:
                A("s_add_u32 s50, s50, 1")
                A("s_cmp_eq_u32 s50, 3")
                A("s_cselect_b32 s53, -2, 1")
                A("s_cselect_b32 s50, 0, s50")
            if s == 2 and m == 6:
                A("s_lshl_b32 s52, s53, 14")
                A("s_lshl_b32 s53, s53, 13")
                for j2 in range(2):
                    A(f"v_add_u32 v{vA+j2}, s52, v{vA+j2}")
                A(f"v_add_u32 v{vB}, s53, v{vB}")
            if s == 2 and m == 7:
                for j2 in range(2, 4):
                    A(f"v_add_u32 v{vA+j2}, s52, v{vA+j2}")
                for s2 in range(1, 4):
                    A(f"v_add_u32 v{vB+s2}, s53, v{vB+s2}")
            if s == 3 and m == 0:
                Q.drain(A)
                A("s_barrier")
                continue
            n = 2
            for _ in range(n):
                if R:
                    tag, ins = R.pop(0)
                    A(ins); Q.issue(tag)
            if s == 3 and m == 6:
                A("s_sub_u32 s51, s51, 1")
                A("s_cmp_lg_u32 s51, 0")
    assert Q.q == q_entry, (Q.q, q_entry)
    A("s_cbranch_scc1 L_cloop1")
    stamp(A, 2, st)
    A("s_waitcnt lgkmcnt(0)")
    A(f"s_mov_b32 s52, {fbits(C0)}")
    A(f"s_mov_b32 s53, {fbits(C1)}")
    A("v_mov_b32 v13, s52")
    A("s_nop 7")
    for m in range(8):
        i, j = m & 1, m >> 1
        c = ACC + 16 * (4 * i + j)
        t0 = 16 + 16 * (m & 1)
        o = 64 + 4 * m
        for e in range(8):
            A(f"v_mul_f32 v{t0+e}, v{c+e}, v{c+e}")
        for e in range(8):
            A(f"v_fma_f32 v{t0+e}, v{t0+e}, s53, v13")
        for e in range(8):
            A(f"v_mul_f32 v{t0+e}, v{t0+e}, v{c+e}")
        for e in range(8):
            A(f"v_exp_f32 v{t0+e}, v{t0+e}")
        for e in range(8):
            A(f"v_mul_f32 v{t0+8+e}, v{c+e}, v{c+8+e}")
        for e in range(8):
            A(f"v_add_f32 v{t0+e}, 1.0, v{t0+e}")
        for e in range(8):
            A(f"v_rcp_f32 v{t0+e}, v{t0+e}")
        for e in range(8):
            A(f"v_mul_f32 v{t0+8+e}, v{t0+8+e}, v{t0+e}")
        for e in range(4):
            A(f"v_cvt_pk_bf16_f32 v{o+e}, v{t0+8+2*e}, v{t0+9+2*e}")
        off = 2048 * j + 1024 * i
        A(f"buffer_store_dwordx4 v[{o}:{o+3}], v12, s[16:19], s{34 + (off >> 12)} offen offset:{off & 4095} {hflags}")
    stamp(A, 3, st)
    A("s_waitcnt vmcnt(0)")
    stamp(A, 4, st)
    dump_stamps(A, 5, st, STB)
    A("s_waitcnt vmcnt(0)")
    A("s_endpgm")


def patterns(NB, look):
    BL = 16 // NB
    if not look:
        return [list(range(16))]
    own = 2 if NB == 2 else 1
    P = []
    for j in range(BL - own):
        seq = list(range(own))
        for b in range(NB):
            rest = [b * BL + p for p in range(own, BL)]
            if b + 1 < NB:
                rest[j:j] = [(b + 1) * BL + p for p in range(own)]
            seq += rest
        assert sorted(seq) == list(range(16))
        P.append(seq)
    return P

def gen_g1(A, st, hflags="", rot1=0, look=0, xrot=0, wfl="", xfl="", pro=3, m16=0, order=0, pke=0):
    name = "g1_kernel"
    A(kstart(name))
    common_setup(A, 224, "1", st)
    A("s_mul_i32 s31, s30, 37")
    A("s_lshr_b32 s31, s31, 8")
    A("s_mul_i32 s32, s31, 7")
    A("s_sub_u32 s32, s30, s32")
    A("s_mul_i32 s33, s29, 7")
    A("s_add_u32 s32, s32, s33")
    A("s_cmp_ge_u32 s28, 4")
    A("s_cbranch_scc1 L_loader1")

    if m16:
        g1_compute16(A, st, hflags, order, pke)
    else:
        g1_compute32(A, st, hflags)
    A("L_loader1:")
    A("s_sub_u32 s33, s28, 4")
    A("v_lshrrev_b32 v1, 3, v0")
    A("v_and_b32 v2, 7, v0")
    A("v_lshrrev_b32 v3, 4, v0")
    A("s_lshl_b32 s34, s31, 2")
    A("s_add_u32 s34, s34, s33")
    A("s_lshl_b32 s34, s34, 17")
    A("v_lshlrev_b32 v4, 11, v1")
    A("v_add_u32 v4, s34, v4")
    A("v_xor_b32 v5, v2, v3")
    A("v_xor_b32 v6, 4, v5")
    A("v_lshl_add_u32 v5, v5, 4, v4")
    A("v_lshl_add_u32 v6, v6, 4, v4")
    vX, vW = 8, 16
    for p in range(8):
        A(f"v_add_u32 v{vX+p}, {16384*p - 1024*(p&3)}, v{5 + (p&1)}")
    A("s_lshl_b32 s34, s33, 4")
    A("v_add_u32 v4, s34, v1")
    A("v_mul_u32_u24 v4, 7168, v4")
    A("s_lshl_b32 s34, s32, 7")
    A("v_add_u32 v4, s34, v4")
    A("v_and_b32 v3, 1, v3")
    A("v_lshlrev_b32 v3, 1, v3")
    A("v_xor_b32 v5, v2, v3")
    A("v_xor_b32 v6, 4, v5")
    A(f"v_lshl_add_u32 v{vW}, v5, 4, v4")
    A(f"v_lshl_add_u32 v{vW+2}, v6, 4, v4")
    if m16:
        A(f"v_add_u32 v{vW+1}, {8*7168-1024}, v{vW+2}")
        A(f"v_mov_b32 v{vW+2}, v{vW}")
        A(f"v_mov_b32 v{vW+3}, v{vW+1}")
    else:
        A(f"v_add_u32 v{vW+1}, {8*7168-1024}, v{vW}")
        A(f"v_add_u32 v{vW+3}, {8*7168-1024}, v{vW+2}")
    A("s_mul_i32 s54, s33, 24576")
    A(f"s_add_u32 s54, s54, {XB}")
    A("s_lshl_b32 s55, s33, 11")
    NB1 = max(rot1, 1)
    BL1 = 16 // NB1
    A("s_mul_i32 s20, s31, 7")
    A("s_sub_u32 s20, s30, s20")
    if rot1 == 0:
        A("s_mov_b32 s20, 0")
    elif rot1 == 1:
        A("s_mul_i32 s20, s20, 37")
        A("s_lshr_b32 s20, s20, 4")
        A("s_lshl_b32 s21, s31, 2")
        A("s_add_u32 s20, s20, s21")
    elif rot1 == 2:
        A("s_lshl_b32 s21, s31, 1")
        A("s_add_u32 s20, s20, s21")
    else:
        A("s_add_u32 s20, s20, s31")
    if xrot:
        A(f"s_mul_i32 s21, s29, {BL1}")
    else:
        A("s_mov_b32 s21, 0")
    PT = patterns(NB1, look)
    pk = lambda q: sum(v << (4 * i) for i, v in enumerate(q))
    A(f"s_mul_i32 s24, s30, {(256 + len(PT) - 1) // len(PT)}")
    A("s_lshr_b32 s24, s24, 8")
    A(f"s_mul_i32 s24, s24, {len(PT)}")
    A("s_sub_u32 s24, s30, s24")
    A(f"s_mov_b32 s22, {pk(PT[0][:8])}")
    A(f"s_mov_b32 s23, {pk(PT[0][8:])}")
    for j in range(1, len(PT)):
        A(f"s_cmp_eq_u32 s24, {j}")
        A(f"s_cselect_b32 s22, {pk(PT[j][:8])}, s22")
        A(f"s_cselect_b32 s23, {pk(PT[j][8:])}, s23")
    def nextc():
        A("s_add_u32 s56, s22, s20")
        A(f"s_and_b32 s56, s56, {BL1 - 1}")
        A("s_add_u32 s57, s22, s21")
        A(f"s_and_b32 s57, s57, {15 & ~(BL1 - 1)}")
        A("s_or_b32 s56, s56, s57")
        A("s_lshr_b64 s[22:23], s[22:23], 4")
        A("s_mul_i32 s57, s56, 458752")
        A("s_lshl_b32 s56, s56, 7")
    nextc()
    A("s_mov_b32 s50, 0")
    A("s_waitcnt lgkmcnt(0)")
    srd(A, 4, 36, 2097152)
    srd(A, 8, 38, 7340032)
    srd(A, 12, 40, 7340032)
    if st:
        srd(A, 16, 48, 0x10000000)

    def issue():
        A("s_mov_b32 m0, s55")
        A("s_add_u32 s58, s55, 8192")
        A(f"buffer_load_dwordx4 v{vW}, s[8:11], s57 offen {wfl} lds")
        A(f"buffer_load_dwordx4 v{vW+1}, s[8:11], s57 offen offset:1024 {wfl} lds")
        A("s_mov_b32 m0, s58")
        A("s_add_u32 s58, s54, 4096")
        A(f"buffer_load_dwordx4 v{vW+2}, s[12:15], s57 offen {wfl} lds")
        A(f"buffer_load_dwordx4 v{vW+3}, s[12:15], s57 offen offset:1024 {wfl} lds")
        A("s_mov_b32 m0, s54")
        A("s_add_u32 s50, s50, 1")
        for p in range(4):
            A(f"buffer_load_dwordx4 v{vX+p}, s[4:7], s56 offen offset:{1024*p} {xfl} lds")
        A("s_mov_b32 m0, s58")
        A("s_cmp_eq_u32 s50, 3")
        for p in range(4, 8):
            A(f"buffer_load_dwordx4 v{vX+p}, s[4:7], s56 offen offset:{1024*(p&3)} {xfl} lds")
        A("s_cselect_b32 s53, -2, 1")
        A("s_cselect_b32 s50, 0, s50")
        A("s_lshl_b32 s52, s53, 14")
        A("s_lshl_b32 s53, s53, 13")
        A("s_add_u32 s55, s55, s52")
        A("s_add_u32 s54, s54, s53")
        nextc()

    for c in range(pro):
        issue()
    stamp(A, 1, st)
    A(f"s_waitcnt vmcnt({12*(pro-1)})")
    stamp(A, 2, st)
    A("s_barrier")
    for c in range(pro, 3):
        issue()
    A("s_waitcnt vmcnt(12)")
    A("s_mov_b32 s51, 13")
    A("L_lloop1:")
    A("s_barrier")
    issue()
    A("s_sub_u32 s51, s51, 1")
    A("s_cmp_lg_u32 s51, 0")
    A("s_waitcnt vmcnt(12)")
    A("s_cbranch_scc1 L_lloop1")
    A("s_barrier")
    A("s_waitcnt vmcnt(0)")
    stamp(A, 3, st)
    A("s_barrier")
    A("s_barrier")
    stamp(A, 4, st)
    dump_stamps(A, 5, st, STB)
    A("s_waitcnt vmcnt(0)")
    A("L_end1:")
    A("s_endpgm")
    return kdesc(name, 256, 102, 256)

def gen_g2(A, st, D=8, hflags="", NB=0, dfl=""):
    name = "g2_kernel"
    A(kstart(name))
    common_setup(A, 256, "2", st)
    A("s_lshr_b32 s31, s29, 1")
    A("s_lshl_b32 s31, s31, 2")
    A("s_and_b32 s33, s30, 3")
    A("s_add_u32 s31, s31, s33")
    A("s_and_b32 s32, s29, 1")
    A("s_lshl_b32 s32, s32, 3")
    A("s_lshr_b32 s33, s30, 2")
    A("s_add_u32 s32, s32, s33")
    ACC = 192
    HB = 64
    FA = {0: 16, 1: 24}
    vH, vWd, vT = 4, 5, 7
    A(f"v_lshlrev_b32 v{vH}, 4, v0")
    A("v_lshrrev_b32 v1, 3, v0")
    A("v_and_b32 v2, 7, v0")
    A("v_bfe_u32 v3, v0, 4, 1")
    A("v_lshlrev_b32 v9, 2, v3")
    A("v_xor_b32 v2, v2, v9")
    A("v_lshlrev_b32 v1, 11, v1")
    A("v_lshl_add_u32 v1, v2, 4, v1")
    A("s_lshl_b32 s33, s32, 7")
    A(f"v_add_u32 v{vWd}, s33, v1")
    A(f"v_add_u32 v{vWd+1}, {8*2048-1024}, v{vWd}")
    A("v_lshrrev_b32 v1, 5, v0")
    A("v_bfe_u32 v2, v0, 2, 2")
    A("v_lshl_add_u32 v1, v1, 3, v2")
    A("v_lshlrev_b32 v1, 7, v1")
    A("v_and_b32 v9, 1, v0")
    A("v_lshl_add_u32 v9, v9, 1, v3")
    A("v_lshrrev_b32 v2, 1, v2")
    A("v_lshlrev_b32 v2, 2, v2")
    A("v_xor_b32 v9, v9, v2")
    A("v_lshl_add_u32 v1, v9, 4, v1")
    A("v_bfe_u32 v2, v0, 1, 1")
    A("v_lshl_add_u32 v1, v2, 3, v1")
    A("s_lshl_b32 s54, s28, 14")
    A(f"v_add_u32 v{vT}, s54, v1")
    A(f"v_xor_b32 v{vT+1}, 64, v{vT}")
    A(f"s_mul_i32 s56, s31, {HT2}")
    A(f"s_mul_i32 s33, s28, {28*2048}")
    A("s_add_u32 s56, s56, s33")
    A(f"s_mul_i32 s57, s28, {28*32768}")
    if NB:
        BL = 28 // NB
        A("s_and_b32 s58, s30, 3")
        A("s_lshl_b32 s58, s58, 1")
        A("s_lshr_b32 s59, s30, 2")
        A("s_add_u32 s58, s58, s59")
        A("s_and_b32 s58, s58, 7")
        A(f"s_mul_i32 s58, s58, {BL}")
        A("s_lshr_b32 s58, s58, 3")
        A("s_lshl_b32 s59, s58, 11")
        A("s_add_u32 s56, s56, s59")
        A("s_lshl_b32 s59, s58, 15")
        A("s_add_u32 s57, s57, s59")
    A("s_waitcnt lgkmcnt(0)")
    srd(A, 16, 48, 0x10000000)
    srd(A, 20, 42, 7340032)
    srd(A, 24, 44, 2097152)

    def issue(s):
        A(f"s_add_u32 m0, s54, {(s % D) * 2048}")
        hb = HB + 8 * (s % D)
        A(f"buffer_load_dwordx4 v[{hb}:{hb+3}], v{vH}, s[16:19], s56 offen {hflags}")
        A(f"buffer_load_dwordx4 v{vWd}, s[20:23], s57 offen {dfl} lds")
        A(f"buffer_load_dwordx4 v{vWd+1}, s[20:23], s57 offen offset:1024 {dfl} lds")
        A(f"buffer_load_dwordx4 v[{hb+4}:{hb+7}], v{vH}, s[16:19], s56 offen offset:1024 {hflags}")
        if NB:
            BL = 28 // NB
            inc = 1 + (BL if s % BL == BL - 1 else 0)
            A("s_add_u32 s58, s58, 1")
            A(f"s_cmp_eq_u32 s58, {BL}")
            A(f"s_cselect_b32 s59, {inc - BL}, {inc}")
            A("s_cselect_b32 s58, 0, s58")
            A("s_lshl_b32 s59, s59, 11")
            A("s_add_u32 s56, s56, s59")
            A("s_lshl_b32 s59, s59, 4")
            A("s_add_u32 s57, s57, s59")
        else:
            A("s_add_u32 s56, s56, 2048")
            A("s_add_u32 s57, s57, 32768")

    def trs(s):
        f = FA[s & 1]
        for a in range(2):
            for t in range(2):
                A(f"ds_read_b64_tr_b16 v[{f+4*a+2*t}:{f+4*a+2*t+1}], v{vT+a} offset:{(s % D)*2048 + 512*t}")

    NS = 28
    for s in range(D - 1):
        issue(s)
    stamp(A, 1, st)
    for r in range(64):
        A(f"v_mov_b32 v{ACC+r}, 0")
    A(f"s_waitcnt vmcnt({4*(D-2)})")
    stamp(A, 2, st)
    trs(0)
    for s in range(NS):
        issued = min(NS, s + D - 1)
        if s + 1 < NS:
            A(f"s_waitcnt vmcnt({4*(issued - (s+2))}) lgkmcnt(0)")
            trs(s + 1)
        else:
            A("s_waitcnt lgkmcnt(0)")
        f = FA[s & 1]
        hb = HB + 8 * (s % D)
        for a in range(2):
            for i in range(2):
                c = ACC + 16 * (2 * a + i)
                A(f"v_mfma_f32_32x32x16_bf16 v[{c}:{c+15}], v[{f+4*a}:{f+4*a+3}], v[{hb+4*i}:{hb+4*i+3}], v[{c}:{c+15}]")
            if a == 0 and s + D - 1 < NS:
                issue(s + D - 1)
    stamp(A, 3, st)
    QS, HS, RS = 1088, 576, 17408
    A("v_and_b32 v1, 31, v0")
    A("v_lshrrev_b32 v2, 5, v0")
    A(f"v_mul_u32_u24 v2, {HS}, v2")
    A("v_lshl_add_u32 v1, v1, 4, v2")
    A(f"s_mul_i32 s33, s28, {RS}")
    A("v_add_u32 v1, s33, v1")
    A("v_lshrrev_b32 v2, 3, v0")
    A("v_bfe_u32 v3, v0, 2, 1")
    A(f"v_mul_u32_u24 v3, {8*QS}, v3")
    A("v_bfe_u32 v9, v0, 1, 1")
    A(f"v_mul_u32_u24 v9, {HS}, v9")
    A("v_add_u32 v3, v3, v9")
    A("v_and_b32 v9, 1, v0")
    A(f"v_mul_u32_u24 v9, {2*QS}, v9")
    A("v_add_u32 v3, v3, v9")
    A("v_lshl_add_u32 v3, v2, 4, v3")
    A("s_lshr_b32 s33, s28, 2")
    A(f"s_mul_i32 s33, s33, {4*QS}")
    A("s_and_b32 s34, s28, 3")
    A("s_lshl_b32 s34, s34, 7")
    A("s_add_u32 s33, s33, s34")
    A("v_add_u32 v3, s33, v3")
    A(f"v_add_u32 v9, {4*RS}, v3")
    A("s_barrier")
    for q in range(16):
        A(f"ds_write_b128 v1, v[{ACC+4*q}:{ACC+4*q+3}] offset:{q*QS}")
    A("s_lshl_b32 s33, s31, 6")
    A("s_lshl_b32 s34, s28, 3")
    A("s_add_u32 s33, s33, s34")
    A("s_lshl_b32 s33, s33, 11")
    A("s_lshl_b32 s34, s32, 7")
    A("s_add_u32 s33, s33, s34")
    A("v_and_b32 v10, 7, v0")
    A("v_lshlrev_b32 v10, 4, v10")
    A("v_lshl_add_u32 v10, v2, 11, v10")
    A("s_waitcnt lgkmcnt(0)")
    A("s_barrier")
    for src in range(8):
        va = 3 if src < 4 else 9
        for g in range(2):
            r = HB + 8 * src + 4 * g
            A(f"ds_read_b128 v[{r}:{r+3}], v{va} offset:{(src & 3)*RS + g*QS}")
    for src in range(1, 8):
        A(f"s_waitcnt lgkmcnt({14 - 2*src})")
        for e in range(8):
            A(f"v_add_f32 v{HB+e}, v{HB+e}, v{HB+8*src+e}")
    for e in range(4):
        A(f"v_cvt_pk_bf16_f32 v{16+e}, v{HB+2*e}, v{HB+2*e+1}")
    A("buffer_store_dwordx4 v[16:19], v10, s[24:27], s33 offen")
    stamp(A, 4, st)
    A("s_waitcnt vmcnt(0)")
    stamp(A, 5, st)
    dump_stamps(A, 6, st, STB + 256 * 512)
    A("s_waitcnt vmcnt(0)")
    A("L_end2:")
    A("s_endpgm")
    return kdesc(name, 256, 102, 256)

def gen(st=False, D=8, sflags="", lflags="", NB=0, dfl="", **k1):
    A = Asm()
    A(HDR.rstrip("\n"))
    A(header([("g1_kernel", 224, 512, 147456), ("g2_kernel", 256, 512, 139264)]).rstrip("\n"))
    d1 = gen_g1(A, st, sflags, **k1)
    d2 = gen_g2(A, st, D, lflags, NB, dfl)
    A(rodata([d1, d2]))
    return A.text()

if __name__ == "__main__":
    base = dict(rot1=4, wfl="nt", pro=2, NB=1)
    C = {
        "d": dict(base),
        "l": dict(base, m16=1),
        "m": dict(base, m16=1, order=1),
        "n": dict(base, m16=1, pke=1),
        "o": dict(base, m16=1, pke=1, look=1, xrot=1),
        "p": dict(base),
        "q": dict(base, m16=1, order=1, pke=1),
    }
    for n, c in C.items():
        open(f"v3{n}_st.s", "w").write(gen(st=True, sflags="sc1", **c))
        open(f"v3{n}.s", "w").write(gen(sflags="sc1", **c))
    print(" ".join(f"work/v3{n}_st.s" for n in C))
```

```python
from gen1 import *
base = dict(rot1=4, wfl="nt", pro=2, NB=1)
C = {"x1": dict(base, wfl=""), "x2": dict(base, rot1=0, NB=0), "x3": dict(base, NB=0), "x4": dict(base, dfl="nt")}
for n, c in C.items():
    open(f"v3{n}.s", "w").write(gen(sflags="sc1", **c))
```

```python
import re
import gen1
from gen1 import *

def diag_tail(which, nwg1=224):
    A = Asm()
    A("s_cmp_lg_u32 s2, 0")
    A("s_cbranch_scc1 L_dq")
    A("s_cmp_lg_u32 s28, 0")
    A("s_cbranch_scc1 L_dq")
    A("s_memrealtime s[70:71]")
    A("s_waitcnt lgkmcnt(0)")
    A("s_add_u32 s72, s70, 3000")
    A("L_dw:")
    A("s_memrealtime s[70:71]")
    A("s_waitcnt lgkmcnt(0)")
    A("s_sub_u32 s73, s72, s70")
    A("s_cmp_gt_i32 s73, 0")
    A("s_cbranch_scc1 L_dw")
    A("v_mbcnt_lo_u32_b32 v0, -1, 0")
    A("v_mbcnt_hi_u32_b32 v0, -1, v0")
    A("v_lshlrev_b32 v1, 6, v0")
    A("v_and_b32 v9, 63, v0")
    A("v_lshlrev_b32 v9, 6, v9")
    def red(base, n, off, op, dst):
        A(f"s_mov_b32 s74, {base}")
        A(f"buffer_load_dword v2, v1, s[16:19], s74 offen offset:{off} sc1")
        A("s_waitcnt vmcnt(0)")
        A("v_subrev_u32 v2, s72, v2")
        for i in range(1, n):
            A(f"s_mov_b32 s74, {base + i*4096}")
            A(f"buffer_load_dword v3, v1, s[16:19], s74 offen offset:{off} sc1")
            A("s_waitcnt vmcnt(0)")
            A("v_subrev_u32 v3, s72, v3")
            A(f"v_{op}_i32 v2, v2, v3")
        A(f"v_readlane_b32 s{dst}, v2, 0")
        for l in range(1, 64):
            A(f"v_readlane_b32 s75, v2, {l}")
            A(f"s_{op}_i32 s{dst}, s{dst}, s75")
    B1, B2 = STB, STB + 256 * 512
    n1 = nwg1 * 8 // 64
    if which in ("v1", "v2", "v3", "v5"):
        red(B1, n1, 56, "min", 76)
        red(B1, n1, 60, "max", 77)
        red(B2, 32, 56, "min", 78)
        red(B2, 32, 60, "max", 79)
        a, b = {"v1": (77, 76), "v2": (78, 77), "v3": (79, 78), "v5": (79, 76)}[which]
        A(f"s_sub_u32 s80, s{a}, s{b}")
        A("s_mul_i32 s80, s80, 10")
    elif which == "v4":
        A(f"s_mov_b32 s74, {B1}")
        A("buffer_load_dword v4, v9, s[16:19], s74 offen offset:52 sc1")
        A("s_mov_b32 s80, 0")
        for i in range(n1):
            A(f"s_mov_b32 s74, {B1 + i*4096}")
            A(f"buffer_load_dword v3, v1, s[16:19], s74 offen offset:52 sc1")
            A("s_waitcnt vmcnt(0)")
            A("v_cmp_ne_u32 vcc, v3, v4")
            A("s_bcnt1_i32_b64 s75, vcc")
            A("s_add_u32 s80, s80, s75")
        A("s_mul_i32 s80, s80, 10")
    else:
        A("s_mov_b32 s80, 0")
    A("s_min_u32 s80, s80, 100000")
    A("s_add_u32 s72, s72, s80")
    A("s_add_u32 s72, s72, 27000")
    A("L_dw2:")
    A("s_memrealtime s[70:71]")
    A("s_waitcnt lgkmcnt(0)")
    A("s_sub_u32 s73, s72, s70")
    A("s_cmp_gt_i32 s73, 0")
    A("s_cbranch_scc1 L_dw2")
    A("L_dq:")
    return A.text()

def with_diag(txt, which):
    txt = txt.replace("offen offset:60\n", "offen offset:60 sc1\n").replace("offen offset:56\n",
        "offen offset:56 sc1\ns_getreg_b32 s93, hwreg(HW_REG_XCC_ID)\ns_and_b32 s93, s93, 15\nv_mov_b32 v2, s93\nbuffer_store_dword v2, v1, s[16:19], s92 offen offset:52 sc1\n")
    i = txt.rindex("L_end2:")
    return txt[:i] + diag_tail(which) + txt[i:]

if __name__ == "__main__":
    base = dict(rot1=4, wfl="", pro=2, NB=1)
    for w in ("v0", "v1", "v2", "v3", "v4", "v5"):
        open(f"dg_{w}.s", "w").write(with_diag(gen(st=True, sflags="sc1", **base), w))
```

```python
import re
import gen1
from gen1 import *

def diag_tail(which, nwg1=224):
    A = Asm()
    A("s_cmp_lg_u32 s2, 0")
    A("s_cbranch_scc1 L_dq")
    A("s_cmp_lg_u32 s28, 0")
    A("s_cbranch_scc1 L_dq")
    A("s_memrealtime s[70:71]")
    A("s_waitcnt lgkmcnt(0)")
    A("s_add_u32 s72, s70, 3000")
    A("L_dw:")
    A("s_memrealtime s[70:71]")
    A("s_waitcnt lgkmcnt(0)")
    A("s_sub_u32 s73, s72, s70")
    A("s_cmp_gt_i32 s73, 0")
    A("s_cbranch_scc1 L_dw")
    A("v_mbcnt_lo_u32_b32 v0, -1, 0")
    A("v_mbcnt_hi_u32_b32 v0, -1, v0")
    A("v_lshlrev_b32 v1, 6, v0")
    A("v_and_b32 v9, 63, v0")
    A("v_lshlrev_b32 v9, 6, v9")
    def red(base, n, off, op, dst):
        A(f"s_mov_b32 s74, {base}")
        A(f"buffer_load_dword v2, v1, s[16:19], s74 offen offset:{off} sc1")
        A("s_waitcnt vmcnt(0)")
        A("v_subrev_u32 v2, s72, v2")
        for i in range(1, n):
            A(f"s_mov_b32 s74, {base + i*4096}")
            A(f"buffer_load_dword v3, v1, s[16:19], s74 offen offset:{off} sc1")
            A("s_waitcnt vmcnt(0)")
            A("v_subrev_u32 v3, s72, v3")
            A(f"v_{op}_i32 v2, v2, v3")
        A("s_nop 1")
        A(f"v_readlane_b32 s{dst}, v2, 0")
        for l in range(1, 64):
            A(f"v_readlane_b32 s75, v2, {l}")
            A(f"s_{op}_i32 s{dst}, s{dst}, s75")
    B1, B2 = STB, STB + 256 * 512
    n1 = nwg1 * 8 // 64
    if which in ("v1", "v2", "v3", "v5"):
        red(B1, n1, 56, "min", 76)
        red(B1, n1, 60, "max", 77)
        red(B2, 32, 56, "min", 78)
        red(B2, 32, 60, "max", 79)
        a, b = {"v1": (77, 76), "v2": (78, 77), "v3": (79, 78), "v5": (79, 76)}[which]
        A(f"s_sub_u32 s80, s{a}, s{b}")
        A("s_mul_i32 s80, s80, 10")
    elif isinstance(which, tuple):
        g, oa, ob, lanes, mul = which
        base, n = (B1, n1) if g == 1 else (B2, 32)
        A("v_mov_b32 v2, 0")
        for i in range(n):
            A(f"s_mov_b32 s74, {base + i*4096}")
            A(f"buffer_load_dword v3, v1, s[16:19], s74 offen offset:{4*oa} sc1")
            A(f"buffer_load_dword v4, v1, s[16:19], s74 offen offset:{4*ob} sc1")
            A("s_waitcnt vmcnt(0)")
            A("v_sub_u32 v3, v4, v3")
            A("v_add_u32 v2, v2, v3")
        A("s_mov_b32 s80, 0")
        A("s_nop 1")
        L = [l for l in range(64) if (l & 7) in lanes]
        for l in L:
            A(f"v_readlane_b32 s75, v2, {l}")
            A("s_add_u32 s80, s80, s75")
        A(f"s_mul_i32 s80, s80, {mul}")
        A("s_lshr_b32 s80, s80, 4")
        A(f"s_mul_i32 s80, s80, {round(4096/(len(L)*n)*16)}")
        A("s_lshr_b32 s80, s80, 12")
    elif which == "v4":
        A(f"s_mov_b32 s74, {B1}")
        A("buffer_load_dword v4, v9, s[16:19], s74 offen offset:52 sc1")
        A("s_mov_b32 s80, 0")
        for i in range(n1):
            A(f"s_mov_b32 s74, {B1 + i*4096}")
            A(f"buffer_load_dword v3, v1, s[16:19], s74 offen offset:52 sc1")
            A("s_waitcnt vmcnt(0)")
            A("v_cmp_ne_u32 vcc, v3, v4")
            A("s_bcnt1_i32_b64 s75, vcc")
            A("s_add_u32 s80, s80, s75")
        A("s_mul_i32 s80, s80, 10")
    else:
        A("s_mov_b32 s80, 0")
    A("s_min_u32 s80, s80, 100000")
    A("s_add_u32 s72, s72, s80")
    A("s_add_u32 s72, s72, 27000")
    A("L_dw2:")
    A("s_memrealtime s[70:71]")
    A("s_waitcnt lgkmcnt(0)")
    A("s_sub_u32 s73, s72, s70")
    A("s_cmp_gt_i32 s73, 0")
    A("s_cbranch_scc1 L_dw2")
    A("L_dq:")
    return A.text()

def with_diag(txt, which):
    txt = re.sub(r"(buffer_store_dword v2, v1, s\[16:19\], s92 offen offset:(\d|1\d|2\d))\n", r"\1 sc1\n", txt)
    txt = txt.replace("offen offset:60\n", "offen offset:60 sc1\n").replace("offen offset:56\n",
        "offen offset:56 sc1\ns_getreg_b32 s93, hwreg(HW_REG_XCC_ID)\ns_and_b32 s93, s93, 15\nv_mov_b32 v2, s93\nbuffer_store_dword v2, v1, s[16:19], s92 offen offset:52 sc1\n")
    i = txt.rindex("L_end2:")
    return txt[:i] + diag_tail(which) + txt[i:]

if __name__ == "__main__":
    base = dict(rot1=4, wfl="", pro=2, NB=1)
    W = {"a": (1, 0, 1, range(4), 1), "b": (1, 1, 2, range(4), 1), "c": (1, 0, 4, range(4), 1), "d": (1, 14, 15, range(4), 10),
         "e": (2, 0, 4, range(8), 1), "f": (2, 14, 15, range(8), 10)}
    for n, w in W.items():
        open(f"dg_{n}.s", "w").write(with_diag(gen(st=True, sflags="sc1", **base), w))
```

```python
import sys, struct
from asmgen import *
from gen1 import Asm, srd, fbits, C0, C1, HDR, patterns

XB = 49152
SPARE = 147456
LDS = 163840
HT = 114688
PB = 8 << 20
STB = 32 << 20
RS = 528
KHS = 16 * RS
SPIN = 1 << 15


class VmQ:
    def __init__(self, A):
        self.A, self.q = A, []
    def op(self, ins, tag):
        self.A(ins); self.q.append(tag)
    def need(self, tag, extra=""):
        idx = max([i for i, t in enumerate(self.q) if t == tag], default=-1)
        assert idx >= 0, tag
        n = len(self.q) - 1 - idx
        assert n < 64
        self.A(f"s_waitcnt vmcnt({n}) {extra}".rstrip())
        self.q = self.q[idx + 1:]


def stamp(A, idx, en):
    if en:
        A(f"s_memtime s[{60+2*idx}:{61+2*idx}]")


def dump_stamps(A, n, en):
    if not en:
        return
    A("s_waitcnt lgkmcnt(0)")
    A("s_memrealtime s[90:91]")
    A("s_waitcnt lgkmcnt(0)")
    A("s_lshl_b32 s92, s2, 3")
    A("s_add_u32 s92, s92, s28")
    A("s_lshl_b32 s92, s92, 6")
    A(f"s_add_u32 s92, s92, {STB}")
    A("v_mov_b32 v1, 0")
    A("s_mov_b64 exec, 1")
    for i in range(n):
        A(f"v_mov_b32 v2, s{60+2*i}")
        A(f"buffer_store_dword v2, v1, s[16:19], s92 offen offset:{4*i} sc1")
    A("v_mov_b32 v2, s94")
    A(f"buffer_store_dword v2, v1, s[16:19], s92 offen offset:48 sc1")
    A("v_mov_b32 v2, s90")
    A(f"buffer_store_dword v2, v1, s[16:19], s92 offen offset:60 sc1")
    A("v_mov_b32 v2, s88")
    A(f"buffer_store_dword v2, v1, s[16:19], s92 offen offset:56 sc1")
    A("s_mov_b64 exec, -1")


def send_base(A, dst, i, w):
    A(f"s_add_u32 s{dst}, s25, {i + 1}")
    A(f"s_and_b32 s{dst}, s{dst}, 3")
    A(f"s_add_u32 s{dst}, s{dst}, s26")
    A(f"s_mul_i32 s{dst}, s{dst}, 49152")
    A(f"s_lshl_b32 s35, s{w}, 11")
    A(f"s_add_u32 s{dst}, s{dst}, s35")
    A(f"s_add_u32 s{dst}, s{dst}, {PB + 16384 * i}")


def compute_waves(A, st, cfg):
    ACC = 128
    PA = {0: 16, 1: 48}
    PBf = {0: 80, 1: 96}
    vA, vB = 4, 8
    A("v_lshrrev_b32 v1, 4, v0")
    A("v_bfe_u32 v2, v0, 2, 2")
    A("v_lshl_add_u32 v2, v1, 3, v2")
    A("v_lshlrev_b32 v2, 7, v2")
    A("v_and_b32 v3, 3, v0")
    A("v_lshl_add_u32 v2, v3, 3, v2")
    A("v_bfe_u32 v3, v0, 3, 2")
    for j in range(4):
        A(f"v_xor_b32 v15, {j}, v3")
        A(f"v_lshl_add_u32 v{vA+j}, v15, 5, v2")
    A("s_mul_i32 s34, s28, 24576")
    A(f"s_add_u32 s34, s34, {XB}")
    A("v_and_b32 v12, 15, v0")
    A("v_lshlrev_b32 v10, 7, v12")
    A("v_add_u32 v10, s34, v10")
    A("v_bfe_u32 v13, v0, 1, 3")
    A("v_xor_b32 v13, v13, v1")
    A(f"v_lshl_add_u32 v{vB}, v13, 4, v10")
    A(f"v_xor_b32 v{vB+1}, 64, v{vB}")
    A("s_lshl_b32 s35, s28, 2")
    A("v_add_u32 v2, s35, v1")
    A(f"v_mul_u32_u24 v11, {RS}, v2")
    A("v_lshl_add_u32 v11, v12, 5, v11")
    A("v_lshlrev_b32 v13, 11, v2")
    A("v_lshl_add_u32 v13, v12, 4, v13")
    A("v_lshlrev_b32 v12, 4, v0")
    A("v_add_u32 v10, s34, v12")
    A("v_and_b32 v3, 3, v0")
    A("v_lshlrev_b32 v3, 6, v3")
    A("s_and_b32 s35, s2, 3")
    A("s_lshl_b32 s35, s35, 6")
    A("v_mov_b32 v14, s35")
    A("v_mov_b32 v15, 1")
    A("s_cmp_eq_u32 s28, 0")
    A(f"s_cselect_b32 s33, {15 - cfg['fl_at']}, -1")
    for i in range(3):
        send_base(A, 20 + i, i, 28)
    A("s_add_u32 s23, s26, s25")
    A("s_mul_i32 s23, s23, 49152")
    A("s_add_u32 s23, s23, s35")
    A(f"s_add_u32 s23, s23, {PB}")
    A(f"s_mul_i32 s56, s24, {8*HT}")
    A("s_mul_i32 s35, s25, 28")
    A("s_mul_i32 s57, s28, 7")
    A("s_add_u32 s35, s35, s57")
    A("s_lshl_b32 s35, s35, 10")
    A("s_add_u32 s56, s56, s35")
    A("s_lshl_b32 s57, s24, 3")
    A("s_add_u32 s57, s57, s25")
    A("s_lshl_b32 s57, s57, 15")
    A("s_lshl_b32 s35, s27, 8")
    A("s_add_u32 s57, s57, s35")
    A("s_lshl_b32 s34, s31, 2")
    A("s_add_u32 s34, s34, s28")
    A(f"s_mul_i32 s34, s34, {4*HT}")
    A("s_lshl_b32 s35, s32, 11")
    A("s_add_u32 s34, s34, s35")
    A(f"s_mov_b32 s59, {SPIN}")
    A(f"s_mov_b32 s58, {0 if cfg.get('noflag') else 64}")
    A("s_waitcnt lgkmcnt(0)")
    srd(A, 16, 48, 0x10000000)
    srd(A, 4, 44, 2097152)
    srd(A, 8, 46, 256)
    A("s_cmp_ge_u32 s30, 28")
    A("s_cbranch_scc1 L_cidle")
    def cclears():
        for i in range(4):
            A(f"s_add_u32 s52, s34, {HT*i}")
            for q in range(2):
                A(f"buffer_store_dwordx4 v[112:115], v12, s[16:19], s52 offen offset:{1024*q} sc1")
        for i in range(3):
            for a in range(2):
                A(f"s_add_u32 s52, s{20+i}, {8192*a}")
                for r in range(2):
                    A(f"buffer_store_dwordx4 v[112:115], v12, s[16:19], s52 offen offset:{1024*r} sc1")
    for r in range(4):
        A(f"v_mov_b32 v{112+r}, -1")
    if cfg.get("cclr") == "start":
        if cfg.get("csl"): A(f"s_sleep {cfg['csl']}")
        cclears()
    if cfg.get("cclr") == "loop":
        A("s_mov_b32 s33, 12")
    if cfg.get("each"):
        A("s_lshl_b32 s95, s2, 2")
        A("s_add_u32 s95, s95, s28")
        A("s_lshl_b32 s95, s95, 15")
        A(f"s_add_u32 s95, s95, {64 << 20}")
    for r in range(128):
        A(f"v_mov_b32 v{ACC+r}, 0")
    A("s_mov_b32 s50, 0")
    A("s_mov_b32 s51, 15")
    acc = lambda j, i: ACC + 64 * (j >> 2) + 16 * i + 4 * (j & 3)

    def reads(s):
        a0, b0 = PA[s], PBf[s]
        RA = lambda j: [f"ds_read_b64_tr_b16 v[{a0+4*j+2*t}:{a0+4*j+2*t+1}], v{vA+(j&3)} offset:{8192*(j>>2)+4096*s+512*t}" for t in range(2)]
        RB = lambda i: [f"ds_read_b128 v[{b0+4*i}:{b0+4*i+3}], v{vB+s} offset:{2048*i}"]
        R = RA(0) + RB(0) + RB(1) + RB(2) + RB(3)
        for j in range(1, 8):
            R += RA(j)
        return R

    def body(last):
        for s in range(2):
            a0, b0 = PA[s], PBf[s]
            R = reads(s ^ 1) if not (last and s) else []
            for m in range(32):
                if last and s:
                    i, j = m >> 3, m & 7
                else:
                    j, i = m >> 2, m & 3
                    if j & 1: i = 3 - i
                c = acc(j, i)
                A(f"v_mfma_f32_16x16x32_bf16 v[{c}:{c+3}], v[{a0+4*j}:{a0+4*j+3}], v[{b0+4*i}:{b0+4*i+3}], v[{c}:{c+3}]")
                if last:
                    ex = {30: ["s_waitcnt lgkmcnt(0)"]} if s == 0 else {}
                elif s == 0:
                    ex = {21: ["s_add_u32 s50, s50, 1", "s_cmp_eq_u32 s50, 3"],
                          22: ["s_cselect_b32 s53, -2, 1", "s_cselect_b32 s50, 0, s50"],
                          23: ["s_lshl_b32 s52, s53, 14", "s_lshl_b32 s53, s53, 13"],
                          24: [f"v_add_u32 v{vA}, s52, v{vA}"], 25: [f"v_add_u32 v{vA+1}, s52, v{vA+1}"],
                          26: [f"v_add_u32 v{vA+2}, s52, v{vA+2}"], 27: [f"v_add_u32 v{vA+3}, s52, v{vA+3}"],
                          28: [f"v_add_u32 v{vB}, s53, v{vB}"], 29: [f"v_add_u32 v{vB+1}, s53, v{vB+1}"],
                          30: ["s_waitcnt lgkmcnt(0)"], 31: ["s_barrier"]}
                else:
                    ex = {24: ["s_cmp_eq_u32 s51, s33", "s_cbranch_scc1 L_arrive", "L_arrived:"],
                          28: ["s_sub_u32 s51, s51, 1", "s_cmp_lg_u32 s51, 0"], 30: ["s_waitcnt lgkmcnt(0)"]}
                if cfg.get("each") and not last and s == 1 and m == 25:
                    for k in range(cfg["each"]):
                        A(f"buffer_store_dwordx4 v[112:115], v12, s[16:19], s95 offen offset:{1024*k} {cfg.get('efl', 'sc1')}")
                    A("s_add_u32 s95, s95, 2048")
                if R:
                    A(R.pop(0))
                for e in ex.get(m, []):
                    A(e)

    A("s_barrier")
    stamp(A, 1, st)
    if st:
        A("s_waitcnt lgkmcnt(0)")
    for ins in reads(0):
        A(ins)
    A("s_waitcnt lgkmcnt(0)")
    A("L_cloop:")
    body(False)
    A("s_cbranch_scc1 L_cloop")
    body(True)
    stamp(A, 2, st)
    V = VmQ(A)
    V.op("buffer_load_dword v2, v3, s[8:11], 0 offen sc1", "F")
    A(f"s_mov_b32 s52, {fbits(C0)}")
    A(f"s_mov_b32 s54, {fbits(C1)}")
    A(f"s_mov_b32 s55, {fbits(C1)}")
    A("v_mov_b32 v14, s52")
    A("v_mov_b32 v15, s52")
    P = lambda r: f"v[{r}:{r+1}]"
    for m in range(8):
        i, q = m >> 1, m & 1
        c = acc(2 * q, i)
        u = c + 64
        t0 = 16 + 16 * (m & 1)
        o = 64 + 4 * m
        for e in range(0, 8, 2):
            A(f"v_pk_mul_f32 {P(t0+e)}, {P(c+e)}, {P(c+e)}")
        for e in range(0, 8, 2):
            A(f"v_pk_fma_f32 {P(t0+e)}, {P(t0+e)}, s[54:55], v[14:15]")
        for e in range(0, 8, 2):
            A(f"v_pk_mul_f32 {P(t0+e)}, {P(t0+e)}, {P(c+e)}")
        for e in range(8):
            A(f"v_exp_f32 v{t0+e}, v{t0+e}")
            if e & 1:
                A(f"v_pk_mul_f32 {P(t0+7+e)}, {P(c+e-1)}, {P(u+e-1)}")
        for e in range(0, 8, 2):
            A(f"v_pk_add_f32 {P(t0+e)}, {P(t0+e)}, 1.0 op_sel_hi:[1,0]")
        for e in range(8):
            A(f"v_rcp_f32 v{t0+e}, v{t0+e}")
        for e in range(0, 8, 2):
            A(f"v_pk_mul_f32 {P(t0+8+e)}, {P(t0+8+e)}, {P(t0+e)}")
        for e in range(4):
            A(f"v_cvt_pk_bf16_f32 v{o+e}, v{t0+8+2*e}, v{t0+9+2*e}")
        for e in range(4):
            A(f"v_min_u32 v{o+e}, -2, v{o+e}")
        if i < 3:
            V.op(f"buffer_store_dwordx4 v[{o}:{o+3}], v12, s[16:19], s34 offen offset:{1024*q} sc1", "H")
            if q:
                A(f"s_add_u32 s34, s34, {HT}")
    stamp(A, 3, st)
    V.need("F")
    A("v_cmp_ne_u32 vcc, s58, v2")
    A("s_cbranch_vccnz L_fretry")
    A("L_g2h:")

    LB = [128, 156, 184]
    RB0 = 16
    T = 100
    retry = []

    def hoff(p):
        return ((p & 1) * 4 + (p >> 1)) * HT

    def hloads(p, emit):
        b = LB[p % 3]
        A(f"s_add_u32 s52, s56, {hoff(p)}")
        A(f"s_add_u32 s53, s56, {hoff(p) + 4096}")
        for k in range(7):
            emit(f"buffer_load_dwordx4 v[{b+4*k}:{b+4*k+3}], v12, s[16:19], s{52 + (k >> 2)} offen offset:{1024*(k&3)} sc1")

    def check(b, n, lab):
        A(f"L_chk{lab}:")
        A(f"v_max3_u32 v96, v{b}, v{b+1}, v{b+2}")
        A(f"v_max3_u32 v97, v{b+3}, v{b+4}, v{b+5}")
        k = 6
        while k < n:
            r = 96 + ((k >> 1) & 1 ^ 1)
            A(f"v_max3_u32 v{r}, v{b+k}, v{b+k+1}, v{r}")
            k += 2
        A("v_max_u32 v96, v96, v97")
        A("v_cmp_eq_u32 vcc, -1, v96")
        A(f"s_cbranch_vccnz L_rty{lab}")
        A(f"L_ok{lab}:")

    def publish(p):
        b = LB[p % 3]
        V.need(("L", p))
        check(b, 28, f"h{p}")
        retry.append((f"h{p}", lambda p=p: hloads(p, A)))
        for k in range(7):
            A(f"ds_write_b128 v10, v[{b+4*k}:{b+4*k+3}] offset:{8192*(p%3)+1024*k}")
        A("s_waitcnt lgkmcnt(0)")
        A("s_barrier")

    def rloads(srcs, emit):
        for i in srcs:
            A(f"s_add_u32 s52, s23, {16384*i}")
            A(f"s_add_u32 s53, s23, {16384*i + 8192}")
            for a in range(2):
                for r in range(2):
                    d = RB0 + 16 * i + 8 * a + 4 * r
                    emit(f"buffer_load_dwordx4 v[{d}:{d+3}], v12, s[16:19], s{52+a} offen offset:{1024*r} sc1")

    def dumpsum(dst, par):
        for kh in range(2):
            for r in range(2):
                d = (dst if kh == 0 else T + 16) + 4 * r
                A(f"ds_read_b128 v[{d}:{d+3}], v11 offset:{2*KHS*par + KHS*kh + 16*r}")
        A("s_waitcnt lgkmcnt(0)")
        for e in range(0, 8, 2):
            A(f"v_pk_add_f32 {P(dst+e)}, {P(dst+e)}, {P(T+16+e)}")

    def final(a, src):
        for e in range(0, 8, 2):
            A(f"v_pk_add_f32 {P(src+e)}, {P(src+e)}, {P(RB0+8*a+e)}")
        for e in range(4):
            A(f"v_cvt_pk_bf16_f32 v{src+e}, v{src+2*e}, v{src+2*e+1}")
        if a:
            A(f"s_add_u32 s57, s57, {64*2048}")
        V.op(f"buffer_store_dwordx4 v[{src}:{src+3}], v13, s[4:7], s57 offen", "O")

    ld = lambda p: hloads(p, lambda ins: V.op(ins, ("L", p)))
    ld(0); ld(1)
    publish(0)
    stamp(A, 4, st)
    ld(2)
    for q in range(2):
        V.op(f"buffer_store_dwordx4 v[{88+4*q}:{91+4*q}], v12, s[16:19], s34 offen offset:{1024*q} sc1", "H")
    for p in range(7):
        publish(p + 1)
        if p + 3 < 8:
            ld(p + 3)
        if p == 5:
            rloads([0, 1], lambda ins: V.op(ins, "R0"))
        if p == 6:
            rloads([2], lambda ins: V.op(ins, "R1"))
        A("s_barrier")
        d = T + 8 * (p & 1)
        dumpsum(d, p & 1)
        if p < 6:
            for e in range(8):
                A(f"v_min_u32 v{d+e}, -2, v{d+e}")
            sb = 20 + (p >> 1)
            for r in range(2):
                V.op(f"buffer_store_dwordx4 v[{d+4*r}:{d+4*r+3}], v12, s[16:19], s{sb} offen offset:{1024*r} sc1", "S")
            if (p & 1) == 0:
                A(f"s_add_u32 s{sb}, s{sb}, 8192")
    stamp(A, 5, st)
    V.need("R0")
    check(RB0, 32, "r0")
    retry.append(("r0", lambda: rloads([0, 1], A)))
    for e in range(0, 16, 2):
        A(f"v_pk_add_f32 {P(RB0+e)}, {P(RB0+e)}, {P(RB0+16+e)}")
    V.need("R1")
    check(RB0 + 32, 16, "r1")
    retry.append(("r1", lambda: rloads([2], A)))
    for e in range(0, 16, 2):
        A(f"v_pk_add_f32 {P(RB0+e)}, {P(RB0+e)}, {P(RB0+32+e)}")
    stamp(A, 6, st)
    final(0, T)
    A("s_barrier")
    dumpsum(T + 8, 1)
    final(1, T + 8)
    stamp(A, 7, st)
    if st:
        A("s_waitcnt vmcnt(0)")
        A(f"s_sub_u32 s94, {SPIN}, s59")
    stamp(A, 8, st)
    dump_stamps(A, 9, st)
    A("s_endpgm")

    for lab, fn in retry:
        A(f"L_rty{lab}:")
        A("s_sub_u32 s59, s59, 1")
        A(f"s_cbranch_scc1 L_give{lab}")
        fn()
        A("s_waitcnt vmcnt(0)")
        A(f"s_branch L_chk{lab}")
        A(f"L_give{lab}:")
        A("s_mov_b32 s59, 0")
        A(f"s_branch L_ok{lab}")

    A("L_arrive:")
    if cfg.get("cclr") == "loop":
        cclears()
    A("s_mov_b64 exec, 1")
    if not cfg.get("noflag"): A("buffer_atomic_add v15, v14, s[8:11], 0 offen " + cfg.get("afl", "sc1"))
    A("s_mov_b64 exec, -1")
    A("s_branch L_arrived")

    A("L_cidle:")
    A(f"s_mov_b32 s34, {24 << 20}")
    A("s_barrier")
    A("s_cmp_lg_u32 s28, 0")
    A("s_cbranch_scc1 L_cidle2")
    A("s_mov_b64 exec, 1")
    if not cfg.get("noflag"): A("buffer_atomic_add v15, v14, s[8:11], 0 offen " + cfg.get("afl", "sc1"))
    A("s_mov_b64 exec, -1")
    A("L_cidle2:")
    A(f"s_sleep {cfg['isl']}")
    stamp(A, 1, st)
    stamp(A, 2, st)
    stamp(A, 3, st)
    A("L_fretry:")
    A("buffer_load_dword v2, v3, s[8:11], 0 offen sc1")
    A("s_sub_u32 s59, s59, 1")
    A("s_cbranch_scc1 L_fgive")
    A("s_waitcnt vmcnt(0)")
    A("v_cmp_ne_u32 vcc, s58, v2")
    A("s_cbranch_vccz L_fok")
    A("s_cmp_ge_u32 s30, 28")
    A("s_cbranch_scc1 L_cidle2")
    A("s_sleep 2")
    A("s_branch L_fretry")
    A("L_fgive:")
    A("s_mov_b32 s59, 0")
    A("s_branch L_g2h")
    A("L_fok:")
    A("s_cmp_lt_u32 s30, 28")
    A("s_cbranch_scc1 L_g2h")
    A("L_iwait:")
    A("buffer_load_dword v2, v12, s[16:19], s56 offen sc1")
    A("s_sub_u32 s59, s59, 1")
    A("s_cbranch_scc1 L_fgive")
    A("s_waitcnt vmcnt(0)")
    A("v_cmp_eq_u32 vcc, -1, v2")
    A("s_cbranch_vccz L_g2h")
    A("s_sleep 8")
    A("s_branch L_iwait")


def loader_waves(A, st, cfg):
    stamp = lambda A, idx, en: globals()["stamp"](A, idx, en == 1)
    rot1, look, xrot, wfl, pro = cfg["rot1"], cfg["look"], cfg["xrot"], cfg["wfl"], cfg["pro"]
    dfl = cfg["dfl"]
    A("L_loader:")
    A("s_sub_u32 s33, s28, 4")
    A("v_lshrrev_b32 v1, 3, v0")
    A("v_and_b32 v2, 7, v0")
    A("v_lshrrev_b32 v3, 4, v0")
    A("s_lshl_b32 s34, s31, 2")
    A("s_add_u32 s34, s34, s33")
    A("s_lshl_b32 s35, s34, 17")
    A("v_lshlrev_b32 v4, 11, v1")
    A("v_add_u32 v7, s35, v4")
    A("v_xor_b32 v5, v2, v3")
    A("v_xor_b32 v6, 4, v5")
    A("v_lshl_add_u32 v5, v5, 4, v7")
    A("v_lshl_add_u32 v6, v6, 4, v7")
    vX, vW = 32, 40
    A("s_lshl_b32 s52, s25, 1")
    for p in range(8):
        A(f"s_add_u32 s53, s52, {p + 2}")
        A("s_and_b32 s53, s53, 7")
        A("s_lshl_b32 s53, s53, 14")
        A(f"s_add_u32 s53, s53, {4096 - 1024*(p&3)}")
        A(f"v_add_u32 v{vX+p}, s53, v{5 + (p&1)}")
    A("s_lshl_b32 s35, s33, 4")
    A("v_add_u32 v7, s35, v1")
    A("v_mul_u32_u24 v7, 7168, v7")
    A("s_lshl_b32 s35, s32, 7")
    A("v_add_u32 v7, s35, v7")
    A("v_and_b32 v8, 1, v3")
    A("v_lshlrev_b32 v8, 1, v8")
    A("v_xor_b32 v5, v2, v8")
    A("v_xor_b32 v6, 4, v5")
    A(f"v_lshl_add_u32 v{vW}, v5, 4, v7")
    A(f"v_lshl_add_u32 v{vW+1}, v6, 4, v7")
    A(f"v_add_u32 v{vW+1}, {8*7168-1024}, v{vW+1}")
    A("s_mul_i32 s54, s33, 24576")
    A(f"s_add_u32 s54, s54, {XB}")
    A("s_lshl_b32 s55, s33, 11")
    NB1 = max(rot1, 1)
    BL1 = 16 // NB1
    A("s_mul_i32 s20, s31, 7")
    A("s_sub_u32 s20, s30, s20")
    if rot1 == 0:
        A("s_mov_b32 s20, 0")
    elif rot1 == 1:
        A("s_mul_i32 s20, s20, 37")
        A("s_lshr_b32 s20, s20, 4")
        A("s_lshl_b32 s21, s31, 2")
        A("s_add_u32 s20, s20, s21")
    elif rot1 == 2:
        A("s_lshl_b32 s21, s31, 1")
        A("s_add_u32 s20, s20, s21")
    else:
        A("s_add_u32 s20, s20, s31")
    if xrot:
        A(f"s_mul_i32 s21, s29, {BL1}")
    else:
        A("s_mov_b32 s21, 0")
    PT = patterns(NB1, look)
    pk = lambda q: sum(v << (4 * i) for i, v in enumerate(q))
    A(f"s_mov_b32 s22, {pk(PT[0][:8])}")
    A(f"s_mov_b32 s23, {pk(PT[0][8:])}")
    if len(PT) > 1:
        A(f"s_mul_i32 s35, s30, {(256 + len(PT) - 1) // len(PT)}")
        A("s_lshr_b32 s35, s35, 8")
        A(f"s_mul_i32 s35, s35, {len(PT)}")
        A("s_sub_u32 s35, s30, s35")
        for j in range(1, len(PT)):
            A(f"s_cmp_eq_u32 s35, {j}")
            A(f"s_cselect_b32 s22, {pk(PT[j][:8])}, s22")
            A(f"s_cselect_b32 s23, {pk(PT[j][8:])}, s23")

    def nextc():
        A("s_add_u32 s56, s22, s20")
        A(f"s_and_b32 s56, s56, {BL1 - 1}")
        A("s_add_u32 s57, s22, s21")
        A(f"s_and_b32 s57, s57, {15 & ~(BL1 - 1)}")
        A("s_or_b32 s56, s56, s57")
        A("s_lshr_b64 s[22:23], s[22:23], 4")
        A("s_mul_i32 s57, s56, 458752")
        A("s_lshl_b32 s56, s56, 7")

    V = VmQ(A)

    def issue(c):
        sl = c % 3
        t = ("C", c)
        A(f"s_add_u32 m0, s55, {16384*sl}")
        A("s_nop 0")
        V.op(f"buffer_load_dwordx4 v{vW}, s[8:11], s57 offen {wfl} lds", t)
        V.op(f"buffer_load_dwordx4 v{vW+1}, s[8:11], s57 offen offset:1024 {wfl} lds", t)
        A(f"s_add_u32 m0, s55, {16384*sl + 8192}")
        A("s_nop 0")
        V.op(f"buffer_load_dwordx4 v{vW}, s[12:15], s57 offen {wfl} lds", t)
        V.op(f"buffer_load_dwordx4 v{vW+1}, s[12:15], s57 offen offset:1024 {wfl} lds", t)
        for h in range(2):
            A(f"s_add_u32 m0, s54, {8192*sl + 4096*h}")
            A("s_nop 0")
            for p in range(4 * h, 4 * h + 4):
                V.op(f"buffer_load_dwordx4 v{vX+p}, s[4:7], s56 offen offset:{1024*(p&3)} lds", t)
        if c < 15:
            nextc()

    vS, vT0, vT = 16, 20, 24

    def setup2():
        A("v_lshlrev_b32 v12, 4, v0")
        for e in range(4):
            A(f"v_mov_b32 v{44+e}, -1")
        A(f"s_mul_i32 s34, s34, {4*HT}")
        A("s_lshl_b32 s35, s32, 11")
        A("s_add_u32 s34, s34, s35")
        for i in range(3):
            send_base(A, 50 + i, i, 33)
        A("v_lshlrev_b32 v5, 1, v3")
        A("v_xor_b32 v5, v5, v2")
        A("v_lshl_add_u32 v5, v5, 4, v4")
        for p in range(4):
            A(f"v_add_u32 v{vS+p}, {p*(16384-1024)}, v5")
        A("s_mul_i32 s58, s25, 896")
        A("s_lshr_b32 s35, s33, 1")
        A("s_mul_i32 s59, s35, 448")
        A("s_add_u32 s58, s58, s59")
        A("s_lshl_b32 s58, s58, 11")
        A("s_lshl_b32 s59, s27, 8")
        A("s_add_u32 s58, s58, s59")
        A("s_and_b32 s59, s33, 1")
        A("s_lshl_b32 s53, s59, 7")
        A("s_add_u32 s58, s58, s53")
        A("v_lshrrev_b32 v5, 2, v0")
        A("v_and_b32 v6, 3, v0")
        A("v_lshlrev_b32 v6, 3, v6")
        A("v_lshl_add_u32 v6, v5, 7, v6")
        A("v_and_b32 v5, 3, v1")
        for j in range(4):
            A(f"v_xor_b32 v7, {j}, v5")
            A(f"v_lshl_add_u32 v{vT0+j}, v7, 5, v6")
        A("v_and_b32 v5, 15, v0")
        A(f"v_mul_u32_u24 v5, {RS}, v5")
        A("v_lshl_add_u32 v5, v3, 4, v5")
        A(f"s_mul_i32 s53, s35, {KHS}")
        A("s_lshl_b32 s59, s59, 8")
        A("s_add_u32 s53, s53, s59")
        A("v_add_u32 v2, s53, v5")
        A("s_mul_i32 s53, s35, 49152")
        A(f"s_add_u32 s53, s53, {XB}")
        A("v_add_u32 v1, s53, v12")
        A("s_lshl_b32 s59, s33, 12")

    clears = []
    for i in range(4):
        for q in range(2):
            clears.append((f"buffer_store_dwordx4 v[44:47], v12, s[16:19], s34 offen offset:{1024*q} sc1",
                           f"s_add_u32 s34, s34, {HT}" if q else None))
    pclears = []
    for i in range(3):
        for a in range(2):
            for r in range(2):
                pclears.append((f"buffer_store_dwordx4 v[44:47], v12, s[16:19], s{50+i} offen offset:{1024*r} sc1",
                                f"s_add_u32 s{50+i}, s{50+i}, 8192" if (r and not a) else None))

    BUF = [(59, SPARE), (54, 8192), (54, 12288), (59, 16384), (54, 16384), (54, 20480), (59, 32768)]

    def unit(u):
        s, o = BUF[u % 7]
        A(f"s_add_u32 m0, s{s}, {o}")
        A("s_nop 0")
        for p in range(4):
            V.op(f"buffer_load_dwordx4 v{vS+p}, s[24:27], s58 offen offset:{1024*p} {dfl} lds", ("U", u))
        A("s_add_u32 s58, s58, 65536")

    nextc()
    A("s_waitcnt lgkmcnt(0)")
    A("s_sub_u32 s36, s36, 4096")
    A("s_subb_u32 s37, s37, 0")
    srd(A, 4, 36, 2097152 + 4096)
    srd(A, 8, 38, 7340032)
    srd(A, 12, 40, 7340032)
    A("s_cmp_ge_u32 s30, 28")
    A("s_cbranch_scc1 L_lidle")
    for c in range(pro):
        issue(c)
    stamp(A, 1, st)
    srd(A, 16, 48, 0x10000000)
    setup2()
    srd(A, 24, 42, 7340032)
    V.need(("C", 0))
    stamp(A, 2, st)
    A("s_barrier")
    for c in range(pro, 3):
        issue(c)
    V.need(("C", 1))
    CL = clears + pclears
    if cfg.get("noclr"):
        CL = [("s_nop 0", p) for _, p in CL]
    c0, cn = cfg["clr0"], cfg["clrn"]
    for it in range(13):
        if it == cfg["fl_at"]:
            assert not CL and "clr" not in V.q
        A("s_barrier")
        if st == 2 and it < 11:
            stamp(A, it + 1, 1)
        issue(it + 3)
        if it >= c0 and CL:
            for _ in range(cn):
                if CL:
                    ins, post = CL.pop(0)
                    V.op(ins, "clr") if not cfg.get("noclr") else A(ins)
                    if post: A(post)
        if it == 12:
            unit(0)
        V.need(("C", it + 2))
    A("s_barrier")
    for u in range(1, 4):
        unit(u)
    V.need(("C", 15))
    A("s_barrier")
    stamp(A, 3, st)
    for u in range(4, 7):
        unit(u)
    A("L_wdtail:")
    assert V.q == [("U", u) for u in range(7) for _ in range(4)]
    AB = 32
    for u in range(14):
        s, o = BUF[u % 7]
        A(f"s_add_u32 s53, s{s}, {o}")
        for j in range(4):
            A(f"v_add_u32 v{vT+j}, s53, v{vT0+j}")
        V.need(("U", u))
        for j in range(4):
            for t in range(2):
                d = AB + 16 * u + 4 * j + 2 * t
                A(f"ds_read_b64_tr_b16 v[{d}:{d+1}], v{vT+j} offset:{2048*t}")
        if u < 7:
            A("s_waitcnt lgkmcnt(0)")
            unit(u + 7)
    A("s_waitcnt lgkmcnt(0)")
    stamp(A, 4, st)
    if st:
        A("s_waitcnt lgkmcnt(0)")

    ACC, BB = 16, 4
    Q = []

    def bread(n):
        p, ks = divmod(n, 14)
        b = BB + 4 * (n % 3)
        off = 8192 * (p % 3) + (24576 if ks >= 7 else 0) + 1024 * (ks % 7)
        A(f"ds_read_b128 v[{b}:{b+3}], v1 offset:{off}")
        Q.append(n)

    def bneed(n):
        idx = Q.index(n)
        A(f"s_waitcnt lgkmcnt({len(Q) - 1 - idx})")
        del Q[:idx + 1]

    def dump(j, par):
        A(f"ds_write_b128 v2, v[{ACC+4*j}:{ACC+4*j+3}] offset:{2*KHS*par + 64*j}")
        Q.append("d")

    A("s_barrier")
    stamp(A, 5, st)
    if st:
        A("s_waitcnt lgkmcnt(0)")
    bread(0); bread(1)
    for n in range(112):
        p, ks = divmod(n, 14)
        b = BB + 4 * (n % 3)
        bneed(n)
        if ks == 3 and p > 0:
            assert "d" not in Q
            A("s_barrier")
        for j in range(4):
            if ks == 0 and p > 0:
                dump(j, (p - 1) & 1)
            a = AB + 16 * ks + 4 * j
            c = f"v[{ACC+4*j}:{ACC+4*j+3}]"
            A(f"v_mfma_f32_16x16x32_bf16 {c}, v[{a}:{a+3}], v[{b}:{b+3}], {'0' if ks == 0 else c}")
            if j == 0 and n + 2 < 112:
                if ks == 12:
                    A("s_barrier")
                bread(n + 2)
    A("s_nop 7")
    for j in range(4):
        dump(j, 1)
    A("s_waitcnt lgkmcnt(0)")
    A("s_barrier")
    stamp(A, 6, st)
    if st:
        A("s_mov_b32 s94, 0")
    dump_stamps(A, 12, st)
    A("s_endpgm")

    A("L_lidle:")
    srd(A, 16, 48, 0x10000000)
    setup2()
    srd(A, 24, 42, 7340032)
    stamp(A, 1, st)
    for ins, post in pclears:
        A(ins)
        if post: A(post)
    A("s_waitcnt vmcnt(0)")
    stamp(A, 2, st)
    A("s_barrier")
    stamp(A, 3, st)
    for u in range(7):
        unit(u)
    A("s_branch L_wdtail")


DEF = dict(rot1=4, look=1, xrot=1, wfl="", dfl="", pro=2, clr0=0, clrn=4, isl=32)


def gen(st=False, **kw):
    cfg = dict(DEF, **kw)
    cfg["fl_at"] = cfg["clr0"] + (20 + cfg["clrn"] - 1) // cfg["clrn"] + 2
    A = Asm()
    A(HDR.rstrip("\n"))
    A(header([(KNAME, 256, 512, LDS)]).rstrip("\n"))
    A(kstart(KNAME))
    A("s_cmp_ge_u32 s2, 256")
    A("s_cbranch_scc1 L_end")
    if st:
        A("s_memrealtime s[88:89]")
    stamp(A, 0, st)
    A("s_load_dwordx8 s[36:43], s[0:1], 0")
    A("s_load_dwordx4 s[44:47], s[0:1], 32")
    A("s_load_dwordx2 s[48:49], s[0:1], 48")
    A("v_lshrrev_b32 v1, 6, v0")
    A("v_and_b32 v0, 63, v0")
    A("s_and_b32 s29, s2, 7")
    A("s_lshr_b32 s30, s2, 3")
    A("v_readfirstlane_b32 s28, v1")
    A("s_mul_i32 s31, s30, 37")
    A("s_lshr_b32 s31, s31, 8")
    A("s_mul_i32 s32, s31, 7")
    A("s_sub_u32 s32, s30, s32")
    A("s_mul_i32 s33, s29, 7")
    A("s_add_u32 s32, s32, s33")
    A("s_lshr_b32 s24, s30, 2")
    A("s_lshr_b32 s25, s29, 1")
    A("s_and_b32 s27, s29, 1")
    A("s_lshl_b32 s27, s27, 2")
    A("s_and_b32 s33, s30, 3")
    A("s_add_u32 s27, s27, s33")
    A("s_lshl_b32 s26, s24, 3")
    A("s_add_u32 s26, s26, s27")
    A("s_lshl_b32 s26, s26, 2")
    A("s_cmp_ge_u32 s28, 4")
    A("s_cbranch_scc1 L_loader")
    compute_waves(A, st, cfg)
    loader_waves(A, st, cfg)
    A("L_end:")
    A("s_endpgm")
    A(rodata([kdesc(KNAME, 256, 102, 256)]))
    return A.text()


if __name__ == "__main__":
    open("f1.s", "w").write(gen())
    open("f1_st.s", "w").write(gen(st=True))
```

```python
from asmgen import *
from gen1 import Asm, srd, fbits, C0, C1, HDR
from gen2 import VmQ, dump_stamps

XB = 49152
SPARE = 147456
LDS = 163840
HT = 114688
PB = 8 << 20
FL = 24 << 20
RF = FL + 65536
DUMP = 32768
SPIN = 1 << 15
SLOT = [0, 3, 1, 2]
S3B = SPARE + 1024
P = lambda r: f"v[{r}:{r+1}]"


def stamp(A, idx, en):
    if en:
        A(f"s_memtime s[{60+2*idx}:{61+2*idx}]")


def patterns(NB, look, own):
    BL = 16 // NB
    if not look:
        return [list(range(16))]
    R = []
    for j in range(BL - own):
        seq = list(range(own))
        for b in range(NB):
            rest = [b * BL + p for p in range(own, BL)]
            if b + 1 < NB:
                rest[j:j] = [(b + 1) * BL + p for p in range(own)]
            seq += rest
        assert sorted(seq) == list(range(16))
        R.append(seq)
    return R


def hoff(p):
    return ((p & 1) * 4 + (p >> 1)) * HT


def flag_check(A, lab, level, vreg, vaddr, sline, sspin, retry, sleep, mask=0x3fff3fff):
    A(f"L_fc{lab}:")
    A(f"v_cmp_gt_u32 vcc, {level}, v{vreg}")
    A(f"s_and_b32 vcc_lo, vcc_lo, {mask}")
    A(f"s_cbranch_scc1 L_fr{lab}")
    A(f"L_fo{lab}:")
    def out():
        A(f"L_fr{lab}:")
        A(f"s_sub_u32 s{sspin}, s{sspin}, 1")
        A(f"s_cbranch_scc1 L_fg{lab}")
        if sleep:
            A(f"s_sleep {sleep}")
        A(f"buffer_load_dword v{vreg}, v{vaddr}, s[16:19], s{sline} offen sc1")
        A("s_waitcnt vmcnt(0)")
        A(f"s_branch L_fc{lab}")
        A(f"L_fg{lab}:")
        A(f"s_mov_b32 s{sspin}, 0")
        A(f"s_branch L_fo{lab}")
    retry.append(out)


def scalars2(A, cfg):
    A("s_lshr_b32 s24, s30, 3")
    A("s_and_b32 s35, s29, 1")
    A("s_lshl_b32 s35, s35, 2")
    A("s_add_u32 s24, s24, s35")
    A("s_and_b32 s27, s30, 7")
    if cfg["cx"]:
        A("s_xor_b32 s27, s27, s35")
    A("s_lshl_b32 s26, s24, 3")
    A("s_add_u32 s26, s26, s27")
    A("s_lshl_b32 s26, s26, 2")
    A("s_lshl_b32 s97, s24, 2")
    A("s_add_u32 s97, s97, s25")
    A("s_lshl_b32 s97, s97, 7")
    A(f"s_add_u32 s97, s97, {FL}")
    A(f"s_mul_i32 s100, s24, {8*HT}")
    A("s_mul_i32 s35, s25, 28672")
    A("s_add_u32 s100, s100, s35")


def compute_waves(A, st, cfg):
    stamp = lambda A, idx, en: globals()["stamp"](A, idx, en in (1, 2))
    ACC = 128
    PA = {0: 16, 1: 48}
    PBf = {0: 80, 1: 96}
    vA, vB = 4, 8
    A("v_lshrrev_b32 v1, 4, v0")
    A("v_bfe_u32 v2, v0, 2, 2")
    A("v_lshl_add_u32 v2, v1, 3, v2")
    A("v_lshlrev_b32 v2, 7, v2")
    A("v_and_b32 v3, 3, v0")
    A("v_lshl_add_u32 v2, v3, 3, v2")
    A("v_bfe_u32 v3, v0, 3, 2")
    for j in range(4):
        A(f"v_xor_b32 v15, {j}, v3")
        A(f"v_lshl_add_u32 v{vA+j}, v15, 5, v2")
    A("s_mul_i32 s34, s28, 24576")
    A(f"s_add_u32 s34, s34, {XB}")
    A("v_and_b32 v12, 15, v0")
    A("v_lshlrev_b32 v10, 7, v12")
    A("v_add_u32 v10, s34, v10")
    A("v_bfe_u32 v13, v0, 1, 3")
    A("v_xor_b32 v13, v13, v1")
    A(f"v_lshl_add_u32 v{vB}, v13, 4, v10")
    A(f"v_xor_b32 v{vB+1}, 64, v{vB}")
    A("v_and_b32 v2, 1, v1")
    A("v_lshlrev_b32 v13, 11, v12")
    A("v_lshl_add_u32 v13, v2, 5, v13")
    A("v_lshrrev_b32 v2, 1, v1")
    A("v_lshl_add_u32 v13, v2, 4, v13")
    A("s_and_b32 s33, s28, 1")
    A("v_lshlrev_b32 v12, 4, v0")
    A("s_lshl_b32 s35, s28, 11")
    A(f"s_add_u32 s35, s35, {DUMP}")
    A("v_add_u32 v11, s35, v12")
    A("v_and_b32 v116, 31, v0")
    A("v_lshlrev_b32 v116, 2, v116")
    A("s_lshl_b32 s35, s29, 2")
    A("v_mov_b32 v14, s35")
    A("v_mov_b32 v3, 0x80")
    A("v_bfrev_b32 v1, 1")
    A("v_cmp_eq_u32 vcc, 0, v0")
    A("v_cndmask_b32 v3, v3, v14, vcc")
    A("v_cndmask_b32 v1, v1, v0, vcc")
    A("s_getreg_b32 s35, hwreg(HW_REG_XCC_ID, 0, 4)")
    A("s_mul_i32 s52, s35, s35")
    A("s_lshl_b32 s52, s52, 18")
    A("s_lshl_b32 s35, s35, 8")
    A("s_add_u32 s35, s35, s52")
    A("s_add_u32 s35, s35, 1")
    A("v_mov_b32 v15, s35")
    A("s_lshl_b32 s58, s35, 5")
    A("s_add_u32 s23, s26, s25")
    A("s_lshl_b32 s22, s23, 2")
    A("s_add_u32 s22, s22, s28")
    A("s_lshl_b32 s22, s22, 7")
    A(f"s_add_u32 s22, s22, {RF}")
    A("s_mul_i32 s23, s23, 24")
    A("s_add_u32 s23, s23, s28")
    A("s_lshl_b32 s23, s23, 10")
    A(f"s_add_u32 s23, s23, {PB}")
    A("s_lshl_b32 s57, s24, 3")
    A("s_add_u32 s57, s57, s25")
    A("s_lshl_b32 s57, s57, 15")
    A("s_lshl_b32 s35, s27, 8")
    A("s_add_u32 s57, s57, s35")
    A("s_lshl_b32 s35, s33, 7")
    A("s_add_u32 s57, s57, s35")
    A("s_and_b32 s35, s28, 2")
    A("s_lshl_b32 s35, s35, 5")
    A("s_add_u32 s57, s57, s35")
    A("s_lshl_b32 s34, s31, 2")
    A("s_add_u32 s34, s34, s28")
    A("s_lshr_b32 s96, s34, 1")
    A("s_lshl_b32 s96, s96, 2")
    A("s_add_u32 s96, s96, s25")
    A("s_lshl_b32 s96, s96, 1")
    A("s_add_u32 s96, s96, s33")
    A("s_lshl_b32 s96, s96, 4")
    A("s_add_u32 s96, s96, s99")
    A("s_lshl_b32 s96, s96, 2")
    A(f"s_add_u32 s96, s96, {FL}")
    A(f"s_mul_i32 s34, s34, {4*HT}")
    A("s_lshl_b32 s35, s32, 11")
    A("s_add_u32 s34, s34, s35")
    A("s_cmp_eq_u32 s28, 0")
    A(f"s_cselect_b32 s33, {15 - cfg['arr']}, -1")
    A(f"s_mov_b32 s59, {SPIN}")
    A("s_waitcnt lgkmcnt(0)")
    srd(A, 16, 48, 0x10000000)
    srd(A, 4, 44, 2097152)
    srd(A, 8, 46, 256)
    if cfg["wp"]:
        srd(A, 84, 38, 7340032)
        srd(A, 12, 40, 7340032)
    A("s_mul_i32 s38, s28, 7168")
    A("s_add_u32 s36, s38, s100")
    A("s_cmp_ge_u32 s28, 2")
    A(f"s_cselect_b32 s37, {S3B - 14336}, 0")
    A("s_add_u32 s38, s38, s37")
    A("s_mul_i32 s37, s28, 24576")
    A(f"s_add_u32 s37, s37, {XB}")
    A("s_cmp_ge_u32 s30, 28")
    A("s_cbranch_scc1 L_cidle")
    for r in range(128):
        A(f"v_mov_b32 v{ACC+r}, 0")
    A("s_mov_b32 s50, 0")
    A("s_mov_b32 s51, 15")
    if cfg["pm"]:
        A("v_lshrrev_b32 v118, 4, v0")
        A(f"v_mul_u32_u24 v118, {HT}, v118")
        A("v_and_b32 v117, 15, v0")
        A("v_lshl_add_u32 v118, v117, 7, v118")
        A(f"s_mul_i32 s21, s28, {cfg['ps']}")
        A(f"s_sub_u32 s21, {15 - cfg['pt']}, s21")
    acc = lambda j, i: ACC + 64 * (j >> 2) + 16 * i + 4 * (j & 3)

    def reads(s):
        a0, b0 = PA[s], PBf[s]
        RA = lambda j: [f"ds_read_b64_tr_b16 v[{a0+4*j+2*t}:{a0+4*j+2*t+1}], v{vA+(j&3)} offset:{8192*(j>>2)+4096*s+512*t}" for t in range(2)]
        RB = lambda i: [f"ds_read_b128 v[{b0+4*i}:{b0+4*i+3}], v{vB+s} offset:{2048*i}"]
        R = RA(0) + RB(0) + RB(1) + RB(2) + RB(3)
        for j in range(1, 8):
            R += RA(j)
        return R

    oreg = lambda m: 80 + 4 * m if m < cfg["hoist"] else 64 + 4 * m

    def gelu(m):
        i, q = m >> 1, m & 1
        c = acc(2 * q, i)
        u = c + 64
        t0 = 16 + 16 * (m & 1)
        o = oreg(m)
        L = []
        for e in range(0, 8, 2):
            L.append(f"v_pk_mul_f32 {P(t0+e)}, {P(c+e)}, {P(c+e)}")
        for e in range(0, 8, 2):
            L.append(f"v_pk_fma_f32 {P(t0+e)}, {P(t0+e)}, s[54:55], v[14:15]")
        for e in range(0, 8, 2):
            L.append(f"v_pk_mul_f32 {P(t0+e)}, {P(t0+e)}, {P(c+e)}")
        for e in range(8):
            L.append(f"v_exp_f32 v{t0+e}, v{t0+e}")
            if e & 1:
                L.append(f"v_pk_mul_f32 {P(t0+7+e)}, {P(c+e-1)}, {P(u+e-1)}")
        for e in range(0, 8, 2):
            L.append(f"v_pk_add_f32 {P(t0+e)}, {P(t0+e)}, 1.0 op_sel_hi:[1,0]")
        for e in range(8):
            L.append(f"v_rcp_f32 v{t0+e}, v{t0+e}")
        for e in range(0, 8, 2):
            L.append(f"v_pk_mul_f32 {P(t0+8+e)}, {P(t0+8+e)}, {P(t0+e)}")
        for e in range(4):
            L.append(f"v_cvt_pk_bf16_f32 v{o+e}, v{t0+8+2*e}, v{t0+9+2*e}")
        return L

    def dma(V, p):
        sl = SLOT[p % 4]
        for k0, n in ((0, 4), (4, 3)):
            if sl == 3:
                A(f"s_add_u32 m0, s38, {1024*k0}")
            else:
                A(f"s_add_u32 m0, s37, {8192*sl + 1024*k0}")
            A(f"s_add_u32 s52, s36, {cfg.get('hfix', hoff(p)) + 1024*k0}")
            for k in range(n):
                V(f"buffer_load_dwordx4 v12, s[16:19], s52 offen offset:{1024*k} {cfg['hfl']} lds")

    def epilogue(fl, lab):
        V = VmQ(A)
        def flag(pos, reg):
            V.need(("H", pos))
            V.op(f"buffer_store_dword v{reg}, v1, s[16:19], s96 offen {fl}", "f")
        for m in range(8):
            i, q = m >> 1, m & 1
            o = oreg(m)
            if m >= cfg["hoist"]:
                for ins in gelu(m):
                    A(ins)
            if m == 1 + cfg["fdel"]:
                flag(0, 112)
            if m == 5:
                flag(1, 113)
            V.op(f"buffer_store_dwordx4 v[{o}:{o+3}], v12, s[16:19], s34 offen offset:{1024*q} {fl}", ("H", i))
            if q:
                A(f"s_add_u32 s34, s34, {HT}")
            if m == cfg["ep"]:
                V.op("buffer_load_dword v2, v116, s[16:19], s97 offen sc1", "E")
        V.need("E")
        stamp(A, 3, st)
        A("v_cmp_gt_u32 vcc, 1, v2")
        A("s_and_b32 s50, vcc_lo, 0x3fff3fff")
        A(f"s_cbranch_scc1 L_ne{lab}")
        dma(A, 0)
        dma(A, 1)
        A("s_waitcnt vmcnt(14)")
        A(f"buffer_store_dword v114, v1, s[16:19], s96 offen {fl}")
        A("s_waitcnt vmcnt(8)")
        def out():
            A(f"L_ne{lab}:")
            A("buffer_load_dword v2, v116, s[16:19], s97 offen sc1")
            A("s_waitcnt vmcnt(1)")
            A(f"buffer_store_dword v114, v1, s[16:19], s96 offen {fl}")
            A("s_branch L_late")
        return out

    def body(last):
        for s in range(2):
            a0, b0 = PA[s], PBf[s]
            R = reads(s ^ 1) if not (last and s) else []
            for m in range(32):
                if last and s:
                    i, j = m >> 3, m & 7
                else:
                    j, i = m >> 2, m & 3
                    if j & 1: i = 3 - i
                c = acc(j, i)
                A(f"v_mfma_f32_16x16x32_bf16 v[{c}:{c+3}], v[{a0+4*j}:{a0+4*j+3}], v[{b0+4*i}:{b0+4*i+3}], v[{c}:{c+3}]")
                if last:
                    ex = {0: ["buffer_load_dword v2, v3, s[8:11], 0 offen sc1"], 30: ["s_waitcnt lgkmcnt(0)"], 31: ["s_barrier"]} if s == 0 else {
                        0: [f"s_mov_b32 s52, {fbits(C0)}", f"s_mov_b32 s54, {fbits(C1)}", f"s_mov_b32 s55, {fbits(C1)}"],
                        1: ["v_mov_b32 v14, s52"], 2: ["v_mov_b32 v15, s52"],
                        3: ["v_mov_b32 v112, 1"], 4: ["v_mov_b32 v113, 2"], 5: ["v_mov_b32 v114, 4"]}
                    if s and cfg["hoist"] and m >= 10:
                        G = sum((gelu(x) for x in range(cfg["hoist"])), [])
                        ex[m] = G[(m - 10) * len(G) // 22:(m - 9) * len(G) // 22]
                elif s == 0:
                    ex = {21: ["s_add_u32 s50, s50, 1", "s_cmp_eq_u32 s50, 3"],
                          22: ["s_cselect_b32 s53, -2, 1", "s_cselect_b32 s50, 0, s50"],
                          23: ["s_lshl_b32 s52, s53, 14", "s_lshl_b32 s53, s53, 13"],
                          24: [f"v_add_u32 v{vA}, s52, v{vA}"], 25: [f"v_add_u32 v{vA+1}, s52, v{vA+1}"],
                          26: [f"v_add_u32 v{vA+2}, s52, v{vA+2}"], 27: [f"v_add_u32 v{vA+3}, s52, v{vA+3}"],
                          28: [f"v_add_u32 v{vB}, s53, v{vB}"], 29: [f"v_add_u32 v{vB+1}, s53, v{vB+1}"],
                          30: ["s_waitcnt lgkmcnt(0)"], 31: ["s_barrier"]}
                else:
                    ex = {24: ["s_cmp_eq_u32 s51, s33", "s_cbranch_scc1 L_arrive", "L_arrived:"],
                          28: ["s_sub_u32 s51, s51, 1", "s_cmp_lg_u32 s51, 0"], 30: ["s_waitcnt lgkmcnt(0)"]}
                    if cfg["pm"]:
                        ex[26] = ["s_cmp_eq_u32 s51, s21", "s_cbranch_scc1 L_own", "L_owned:"]
                if R:
                    A(R.pop(0))
                for e in ex.get(m, []):
                    A(e)

    A("s_barrier")
    stamp(A, 1, st)
    if st:
        A("s_waitcnt lgkmcnt(0)")
    for ins in reads(0):
        A(ins)
    A("s_waitcnt lgkmcnt(0)")
    A("L_cloop:")
    body(False)
    A("s_cbranch_scc1 L_cloop")
    body(True)
    stamp(A, 2, st)
    A("L_dchk:")
    A("s_waitcnt vmcnt(0)")
    A("v_readlane_b32 s52, v2, 0")
    A("v_readlane_b32 s53, v2, 1")
    A("s_cmp_lt_u32 s53, 128")
    A("s_cbranch_scc1 L_dretry")
    A("s_cmp_lg_u32 s52, s58")
    A("s_cbranch_scc1 L_dslow")
    if cfg.get("slow"):
        A("s_branch L_epslow")
    retry = [epilogue(cfg["sfl"], "f")]
    A("L_g2h:")
    A("s_barrier")
    stamp(A, 4, st)
    V = VmQ(A)
    V.q = [("L", 1)] * 7
    vd = lambda p: dma(lambda ins: V.op(ins, ("L", p)), p)

    def late():
        A("L_late:")
        A("s_waitcnt vmcnt(1)")
        flag_check(A, "c", 1, 2, 116, 97, 59, retry, cfg["psl"])
        dma(A, 0)
        dma(A, 1)
        A("s_waitcnt vmcnt(7)")
        A("s_branch L_g2h")
    retry.append(late)

    flag_check(A, "a", 2, 2, 116, 97, 59, retry, 1)
    for p in (2, 3):
        vd(p)
    V.op("buffer_load_dword v2, v116, s[16:19], s97 offen sc1", "P")
    for p in range(0, 7):
        if ("L", p + 1) in V.q:
            V.need(("L", p + 1))
        A("s_barrier")
        if p == 1:
            V.need("P")
            flag_check(A, "b", 4, 2, 116, 97, 59, retry, 1)
        if 1 <= p < 5 and not cfg.get("nodma"):
            vd(p + 3)
        if p == 5:
            V.op("buffer_load_dword v2, v116, s[16:19], s22 offen sc1", "F")

    A("L_tail:")
    stamp(A, 5, st)
    V = VmQ(A)
    RB0, T, U = 16, 48, 80
    rr = lambda i, a: RB0 + 8 * i + 4 * a

    def rloads(lst, emit):
        for i, a in lst:
            A(f"s_add_u32 s52, s23, {8192*i + 4096*a}")
            emit(f"buffer_load_dwordx4 v[{rr(i,a)}:{rr(i,a)+3}], v12, s[16:19], s52 offen sc1")

    def check(b, n, lab, lst):
        A(f"L_chk{lab}:")
        A(f"v_max_u32 v96, v{b}, v{b+1}")
        for k in range(2, n, 2):
            A(f"v_max3_u32 v96, v{b+k}, v{b+k+1}, v96")
        A("v_cmp_eq_u32 vcc, -1, v96")
        A(f"s_cbranch_vccnz L_rty{lab}")
        A(f"L_ok{lab}:")
        def out():
            A(f"L_rty{lab}:")
            A("s_sub_u32 s59, s59, 1")
            A(f"s_cbranch_scc1 L_give{lab}")
            rloads(lst, A)
            A("s_waitcnt vmcnt(0)")
            A(f"s_branch L_chk{lab}")
            A(f"L_give{lab}:")
            A("s_mov_b32 s59, 0")
            A(f"s_branch L_ok{lab}")
        retry.append(out)

    def dumpread(dst, par):
        for r in range(2):
            A(f"ds_read_b128 v[{dst+4*r}:{dst+4*r+3}], v11 offset:{8192*par + 1024*r}")

    def addv(dst, src):
        for e in range(0, 8, 2):
            A(f"v_pk_add_f32 {P(dst+e)}, {P(dst+e)}, {P(src+e)}")

    def unpack(dst, src):
        for e in range(4):
            A(f"v_lshlrev_b32 v{dst+2*e}, 16, v{src+e}")
            A(f"v_and_b32 v{dst+2*e+1}, 0xffff0000, v{src+e}")

    def pack(dst, src):
        for e in range(4):
            A(f"v_cvt_pk_bf16_f32 v{dst+e}, v{src+2*e}, v{src+2*e+1}")
        A("s_nop 1")
        A(f"v_permlane16_swap_b32 v{dst}, v{dst+2}")
        A(f"v_permlane16_swap_b32 v{dst+1}, v{dst+3}")

    A("s_waitcnt vmcnt(0)")
    flag_check(A, "d", 1, 2, 116, 22, 59, retry, cfg["rsl"], (1 << cfg["nf"]) - 1)
    rloads([(0, 0), (1, 0), (2, 0), (0, 1), (1, 1)], A)
    A("s_barrier")
    rloads([(2, 1)], A)
    dumpread(T, 0)
    A("s_waitcnt vmcnt(1)")
    nf = cfg["nf"]
    check(rr(nf, 0), 20 - 8 * nf, "r0", [(i, a) for i in range(nf, 3) for a in range(2)])
    A("s_waitcnt lgkmcnt(0)")
    for i in range(3):
        unpack(U, rr(i, 0))
        addv(T, U)
    pack(T, T)
    A(f"buffer_store_dwordx4 v[{T}:{T+3}], v13, s[4:7], s57 offen {cfg['ofl']}")
    A(f"s_add_u32 s57, s57, {64*2048}")
    unpack(T + 16, rr(0, 1))
    unpack(U, rr(1, 1))
    addv(T + 16, U)
    A("s_waitcnt vmcnt(1)")
    check(rr(2, 1), 4, "r1", [(2, 1)])
    unpack(U, rr(2, 1))
    addv(T + 16, U)
    stamp(A, 6, st)
    A("s_barrier")
    dumpread(U, 1)
    A("s_waitcnt lgkmcnt(0)")
    addv(T + 16, U)
    pack(T + 16, T + 16)
    A(f"buffer_store_dwordx4 v[{T+16}:{T+19}], v13, s[4:7], s57 offen {cfg['ofl']}")
    stamp(A, 7, st)
    if st:
        A("s_waitcnt vmcnt(0)")
        A(f"s_sub_u32 s94, {SPIN}, s59")
    stamp(A, 8, st)
    dump_stamps(A, 9, st)
    A("s_endpgm")

    for fn in retry:
        fn()

    A("L_arrive:")
    A("s_mov_b64 exec, 1")
    if cfg["otch"]:
        A("buffer_load_dword v117, v13, s[4:7], s57 offen")
    A("buffer_atomic_add v15, v14, s[8:11], 0 offen")
    A("s_mov_b64 exec, -1")
    A("s_branch L_arrived")

    if cfg["pm"]:
        mk = ((1 << (16 * cfg["pm"])) - 1) << (64 - 16 * cfg["pm"])
        A("L_own:")
        A(f"s_mov_b32 exec_lo, {mk & 0xffffffff}")
        A(f"s_mov_b32 exec_hi, {mk >> 32}")
        A("buffer_load_dword v117, v118, s[16:19], s34 offen sc1")
        A("s_mov_b64 exec, -1")
        A("s_branch L_owned")

    A("L_dslow:")
    A("s_and_b32 s52, s52, 255")
    A("s_cmp_ge_u32 s52, 32")
    A("s_cbranch_scc1 L_epslow")
    A("L_dretry:")
    A("s_sub_u32 s59, s59, 1")
    A("s_cbranch_scc1 L_dgive")
    A("s_sleep 4")
    A("buffer_load_dword v2, v3, s[8:11], 0 offen sc1")
    A("s_branch L_dchk")
    A("L_dgive:")
    A("s_mov_b32 s59, 0")
    A("L_epslow:")
    out = epilogue("sc1", "s")
    A("s_branch L_g2h")
    out()

    def wpre():
        for b in cfg["wp"]:
            A(f"s_add_u32 s52, s29, {b}")
            A("s_and_b32 s52, s52, 3")
            A("s_lshl_b32 s52, s52, 2")
            A("s_add_u32 s52, s52, s30")
            A("s_sub_u32 s52, s52, 28")
            A("s_lshl_b32 s52, s52, 2")
            A("s_add_u32 s52, s52, s28")
            A(f"s_mul_i32 s52, s52, {16*7168}")
            A("s_mul_i32 s53, s25, 1792")
            A("s_add_u32 s52, s52, s53")
            A("v_and_b32 v5, 15, v0")
            A("v_min_u32 v5, 13, v5")
            A("v_lshlrev_b32 v5, 7, v5")
            A("v_lshrrev_b32 v6, 4, v0")
            A("v_mul_u32_u24 v6, 7168, v6")
            A("v_add_u32 v5, v5, v6")
            for k in range(cfg["wn"]):
                A(f"buffer_load_dword v{24+2*k}, v5, s[84:87], s52 offen")
                A(f"buffer_load_dword v{25+2*k}, v5, s[12:15], s52 offen")
                A(f"s_add_u32 s52, s52, {4*7168}")

    A("L_cidle:")
    A("s_barrier")
    for e in range(4):
        A(f"v_mov_b32 v{112+e}, 0")
        A(f"v_mov_b32 v{108+e}, -1")
    A("s_sub_u32 s50, s30, 28")
    A("s_lshl_b32 s50, s50, 3")
    A("s_add_u32 s50, s50, s29")
    A("s_lshl_b32 s50, s50, 2")
    A("s_add_u32 s50, s50, s28")
    A("s_lshl_b32 s52, s50, 10")
    A(f"s_add_u32 s52, s52, {RF}")
    A("buffer_store_dwordx4 v[112:115], v12, s[16:19], s52 offen sc1")
    A("buffer_store_dword v112, v116, s[16:19], s97 offen sc1")
    A("s_cmp_lg_u32 s28, 0")
    A("s_cbranch_scc1 L_cidle2")
    A("s_sub_u32 s52, 31, s30")
    A("s_lshl_b32 s52, s52, 9")
    A("s_sub_u32 s52, s97, s52")
    A("buffer_store_dword v112, v116, s[16:19], s52 offen sc1")
    A("s_mov_b64 exec, 1")
    A("buffer_atomic_add v15, v14, s[8:11], 0 offen")
    A("s_mov_b64 exec, -1")
    A("L_cidle2:")
    if not cfg["cf"]:
        wpre()
    stamp(A, 1, st)
    A("s_mul_i32 s50, s50, 49152")
    for j in range(12):
        if j % 6 < 2 * cfg["nf"]:
            continue
        A(f"s_add_u32 s52, s50, {PB + 4096 * j}")
        for k in range(4):
            A(f"buffer_store_dwordx4 v[108:111], v12, s[16:19], s52 offen offset:{1024*k} sc1")
    if cfg["cf"]:
        wpre()
    A(f"s_waitcnt vmcnt({2 * cfg['wn'] * len(cfg['wp']) * cfg['cf']})")
    A("v_mov_b32 v7, 0x80")
    A("v_mov_b32 v15, 1")
    A("v_mov_b32 v2, 0")
    stamp(A, 2, st)
    A("s_mov_b64 exec, 1")
    A("buffer_atomic_add v15, v7, s[8:11], 0 offen")
    A("s_mov_b64 exec, -1")
    if cfg["tb"] >= 0:
        A("s_barrier")
    if cfg["it"]:
        A("s_sub_u32 s52, s30, 28")
        A("s_lshl_b32 s52, s52, 2")
        A("s_add_u32 s52, s52, s28")
        A("s_lshl_b32 s52, s52, 1")
        if cfg["tm"]:
            A("s_and_b32 s53, s28, 1")
            A("s_sub_u32 s52, s52, s53")
        J = (1 + cfg["tm"]) * HT - 28672
        A(f"s_mul_i32 s52, s52, {HT}")
        A("s_add_u32 s52, s52, s100")
        A(f"s_sub_u32 s52, s52, {24*HT}")
        A("v_lshlrev_b32 v5, 7, v0")
        A("v_lshrrev_b32 v6, 5, v0")
        A(f"v_mul_u32_u24 v6, {J}, v6")
        A("v_add_u32 v6, v6, v5")
        for k in range(cfg["tn"]):
            A(f"buffer_load_dword v{16+k}, v{6 if k == 3 else 5}, s[16:19], s52 offen sc1")
            A(f"s_add_u32 s52, s52, {8192 + (J if k == 3 else 0)}")
            if cfg["it"] > 1:
                A(f"s_waitcnt vmcnt({cfg['it'] - 2})")
        if st:
            A("s_waitcnt vmcnt(0)")
    stamp(A, 3, st)
    A("s_branch L_late")


def loader_waves(A, st, cfg):
    stamp = lambda A, idx, en: globals()["stamp"](A, idx, en == 1)
    rot1, look, xrot, pro, nu = cfg["rot1"], cfg["look"], cfg["xrot"], cfg["pro"], cfg["nu"]
    vX, vW, vS, vT0, vT = 4, 13, 16, 20, 24
    NB1 = rot1
    BL1 = 16 // NB1
    A("s_sub_u32 s33, s28, 4")
    A("v_lshrrev_b32 v1, 3, v0")
    A("v_and_b32 v2, 7, v0")
    A("v_lshrrev_b32 v3, 4, v0")
    A("v_lshl_add_u32 v31, s33, 4, v1")
    A("v_mul_u32_u24 v31, 7168, v31")
    A("v_and_b32 v27, 2, v1")
    A("v_lshl_add_u32 v31, s32, 7, v31")
    A("v_xor_b32 v29, v2, v27")
    A(f"v_lshl_add_u32 v{vW}, v29, 4, v31")
    A(f"v_xor_b32 v{vW+1}, 64, v{vW}")
    A(f"v_add_u32 v{vW+1}, {8*7168-1024}, v{vW+1}")
    A("s_lshl_b32 s55, s33, 11")
    A("s_and_b32 s20, s31, 1")
    A(f"s_mul_i32 s20, s20, {BL1 // 2}")
    A("s_add_u32 s20, s20, s99")
    A(f"s_mul_i32 s21, s29, {BL1 * xrot}")
    A(f"s_and_b32 s56, s20, {BL1 - 1}")
    A(f"s_and_b32 s57, s21, {15 & ~(BL1 - 1)}")
    A("s_or_b32 s56, s56, s57")
    A("s_mul_i32 s57, s56, 458752")
    A("s_mov_b32 s10, 7340032")
    A("s_mov_b32 s11, 0x20000")
    A("s_mov_b64 s[14:15], s[10:11]")

    def xsetup():
        A("s_sub_u32 s4, s36, 4096")
        A("s_subb_u32 s5, s37, 0")
        A(f"s_mov_b32 s6, {2097152 + 4096}")
        A("s_mov_b32 s7, s11")
        A("s_lshl_b32 s56, s56, 7")
        A("s_lshl_b32 s34, s31, 2")
        A("s_add_u32 s34, s34, s33")
        A("v_lshl_add_u32 v31, s34, 17, v28")
        A("v_xor_b32 v29, v2, v3")
        A("v_lshl_add_u32 v29, v29, 4, v31")
        A("v_xor_b32 v30, 64, v29")
        for j in range(4):
            A(f"v_add_u32 v{vX+j}, {4096 - 1024*j + 16384*(j&1)}, v{29 + (j&1)}")
        A("s_lshl_b32 s52, s25, 15")
        for p in (6, 4, 2, 0):
            A(f"s_add_u32 s53, s52, {(p + 2) << 14}")
            A("s_and_b32 s53, s53, 0x1c000")
            A(f"v_add_u32 v{vX+p}, s53, v{vX+(p&3)}")
            A(f"v_add_u32 v{vX+p+1}, s53, v{vX+(p&3)+1}")

    def ringbase():
        A("s_mul_i32 s54, s33, 24576")
        A(f"s_add_u32 s54, s54, {XB}")
        A("v_lshlrev_b32 v28, 11, v1")

    PT = patterns(NB1, look, cfg["own"])
    pk = lambda q: sum(v << (4 * i) for i, v in enumerate(q))
    assert all(q[0] == 0 for q in PT)
    PT = [q[1:] for q in PT]

    def psetup():
        A(f"s_mov_b32 s22, {pk(PT[0][:8])}")
        A(f"s_mov_b32 s23, {pk(PT[0][8:])}")
        if len(PT) > 1:
            A(f"s_mul_i32 s35, s30, {(256 + len(PT) - 1) // len(PT)}")
            A("s_lshr_b32 s35, s35, 8")
            A(f"s_mul_i32 s35, s35, {len(PT)}")
            A("s_sub_u32 s35, s30, s35")
            for j in range(1, len(PT)):
                A(f"s_cmp_eq_u32 s35, {j}")
                A(f"s_cselect_b32 s22, {pk(PT[j][:8])}, s22")
                A(f"s_cselect_b32 s23, {pk(PT[j][8:])}, s23")

    def nextc():
        A("s_add_u32 s56, s22, s20")
        A(f"s_and_b32 s56, s56, {BL1 - 1}")
        A("s_add_u32 s57, s22, s21")
        A(f"s_and_b32 s57, s57, {15 & ~(BL1 - 1)}")
        A("s_or_b32 s56, s56, s57")
        A("s_lshr_b64 s[22:23], s[22:23], 4")
        A("s_mul_i32 s57, s56, 458752")
        A("s_lshl_b32 s56, s56, 7")

    V = VmQ(A)

    def issue(c):
        sl = c % 3
        t = ("C", c)
        A(f"s_add_u32 m0, s55, {16384*sl}")
        A("s_nop 0")
        V.op(f"buffer_load_dwordx4 v{vW}, s[8:11], s57 offen lds", t)
        V.op(f"buffer_load_dwordx4 v{vW+1}, s[8:11], s57 offen offset:1024 lds", t)
        A(f"s_add_u32 m0, s55, {16384*sl + 8192}")
        A("s_nop 0")
        V.op(f"buffer_load_dwordx4 v{vW}, s[12:15], s57 offen lds", t)
        V.op(f"buffer_load_dwordx4 v{vW+1}, s[12:15], s57 offen offset:1024 lds", t)
        if c == 0:
            ringbase()
            xsetup()
        for h in range(2):
            A(f"s_add_u32 m0, s54, {8192*sl + 4096*h}")
            A("s_nop 0")
            for p in range(4 * h, 4 * h + 4):
                V.op(f"buffer_load_dwordx4 v{vX+p}, s[4:7], s56 offen offset:{1024*(p&3)} lds", t)
        if c == 0:
            psetup()
        if c < 15:
            nextc()

    def setup2():
        scalars2(A, cfg)
        srd(A, 16, 48, 0x10000000)
        A("v_lshlrev_b32 v12, 4, v0")
        A("v_lshlrev_b32 v29, 1, v3")
        A("v_xor_b32 v29, v29, v2")
        A("v_lshl_add_u32 v29, v29, 4, v28")
        for p in range(4):
            A(f"v_add_u32 v{vS+p}, {p*(16384-1024)}, v29")
        A("s_mul_i32 s58, s25, 896")
        A("s_lshr_b32 s35, s33, 1")
        A("s_mul_i32 s59, s35, 448")
        A("s_add_u32 s58, s58, s59")
        A("s_lshl_b32 s58, s58, 11")
        A("s_lshl_b32 s59, s27, 8")
        A("s_add_u32 s58, s58, s59")
        A("s_and_b32 s59, s33, 1")
        A("s_lshl_b32 s53, s59, 7")
        A("s_add_u32 s58, s58, s53")
        A("v_lshrrev_b32 v29, 2, v0")
        A("v_and_b32 v30, 3, v0")
        A("v_lshlrev_b32 v30, 3, v30")
        A("v_lshl_add_u32 v30, v29, 7, v30")
        A("v_and_b32 v29, 3, v1")
        A("s_and_b32 s53, s33, 2")
        A("v_xor_b32 v29, s53, v29")
        A(f"v_lshl_add_u32 v{vT0}, v29, 5, v30")
        A(f"v_xor_b32 v{vT0+1}, 32, v{vT0}")
        A("s_lshl_b32 s59, s33, 12")
        A("s_xor_b32 s45, s59, 0x2000")
        A("s_mul_i32 s44, s45, 6")
        A(f"s_add_u32 s44, s44, {XB}")
        A("s_and_b32 s53, s33, 1")
        A("s_mul_i32 s53, s53, 15360")
        A("s_lshl_b32 s52, s35, 6")
        A("s_add_u32 s53, s53, s52")
        A(f"s_add_u32 s53, s53, {SPARE}")
        A("v_mov_b32 v22, s53")
        A("v_xor_b32 v23, 64, v22")
        A("s_mul_i32 s53, s35, 49152")
        A(f"s_add_u32 s52, s53, {XB}")
        A("v_add_u32 v0, s52, v12")
        A(f"s_sub_u32 s52, {XB + 49152}, s53")
        A("v_add_u32 v1, s52, v12")
        A(f"s_mul_i32 s53, s35, {S3B - 49152}")
        A(f"s_add_u32 s39, s53, {-XB}")
        A(f"s_sub_u32 s40, {S3B - 49152 - XB}, s53")
        A("s_lshl_b32 s41, s33, 11")
        A(f"s_add_u32 s41, s41, {DUMP}")
        A("s_sub_u32 s41, s41, s52")
        A("s_lshl_b32 s53, s33, 10")
        A("s_sub_u32 s53, s53, s52")
        for i in range(3):
            d = 36 + i
            A(f"s_add_u32 s{d}, s25, {i + 1}")
            A(f"s_and_b32 s{d}, s{d}, 3")
            A(f"s_add_u32 s{d}, s{d}, s26")
            if i < cfg["nf"]:
                A(f"s_lshl_b32 s{d+56}, s{d}, 2")
                A(f"s_add_u32 s{d+56}, s{d+56}, s33")
                A(f"s_lshl_b32 s{d+56}, s{d+56}, 7")
                A(f"s_add_u32 s{d+56}, s{d+56}, {RF + 4 * i}")
            A(f"s_mul_i32 s{d}, s{d}, 24576")
            A(f"s_add_u32 s{d}, s{d}, s53")
            A(f"s_add_u32 s{d}, s{d}, {PB + 8192 * i}")
        A(f"s_mov_b32 s51, {SPIN}")
        srd(A, 24, 42, 7340032)

    BUF = [(59, SPARE), (54, 8192), (54, 12288), (59, 16384), (54, 16384), (54, 20480), (59, 32768)]
    PAR = {59: 45, 54: 44}
    AB = 32

    def unit(u, b):
        s, o = BUF[b]
        A(f"s_add_u32 m0, s{s}, {o}")
        A("s_nop 0")
        for p in range(4):
            V.op(f"buffer_load_dwordx4 v{vS+p}, s[24:27], s58 offen offset:{1024*p} lds", ("U", u))
        A("s_add_u32 s58, s58, 65536")

    def uaddr(dst, s, o):
        A(f"s_add_u32 s53, s{s}, {o}")
        A(f"s_add_u32 s52, s{PAR[s]}, {o}")
        for j in range(2):
            A(f"v_add_u32 v{dst+j}, s53, v{vT0+j}")
            A(f"v_add_u32 v{dst+2+j}, s52, v{vT0+j}")

    def uread(u, part, b):
        s, o = BUF[b]
        va, o = (vT, 0) if b == 0 else ({54: 4, 59: 8}[s], o)
        for j in range(2):
            for t in range(2):
                d = AB + 16 * u + 8 * part + 4 * j + 2 * t
                A(f"ds_read_b64_tr_b16 v[{d}:{d+1}], v{va+2*part+j} offset:{o + 2048*t}")

    def publish(val):
        A(f"v_mov_b32 v29, {val}")
        A("s_mov_b64 exec, 1")
        A("ds_write_b32 v22, v29")
        A("s_mov_b64 exec, -1")

    def await_partner(val, lab):
        A(f"L_pw{lab}:")
        A("ds_read_b32 v30, v23")
        A("s_waitcnt lgkmcnt(0)")
        A(f"v_cmp_gt_u32 vcc, {val}, v30")
        A(f"s_cbranch_vccnz L_pw{lab}")

    def tail(u0):
        nb = cfg["bat"]
        buf = lambda u: 1 + (u - u0) % 6
        for i, f in enumerate(range(u0, 14, nb)):
            us = list(range(f, min(f + nb, 14)))
            V.need(("U", us[-1]))
            publish(i + 1)
            for u in us:
                uread(u, 0, buf(u))
            await_partner(i + 1, f"{u0}_{i}")
            for u in us:
                if i >= 1 and u - nb + 6 < 14:
                    unit(u - nb + 6, buf(u - nb))
                uread(u, 1, buf(u))
            if u0 == 0 and i == cfg["tb"]:
                A("s_barrier")

    stamp(A, 10, st)
    A("s_cmp_ge_u32 s30, 28")
    A("s_waitcnt lgkmcnt(0)")
    stamp(A, 11, st)
    A("s_cbranch_scc1 L_lidle")
    A("s_mov_b64 s[8:9], s[38:39]")
    A("s_mov_b64 s[12:13], s[40:41]")
    for c in range(pro):
        issue(c)
    stamp(A, 1, st)
    setup2()
    uaddr(vT, *BUF[0])
    V.need(("C", 0))
    stamp(A, 2, st)
    A("s_barrier")
    for c in range(pro, 3):
        issue(c)
    V.need(("C", 1))
    pre = list(cfg["pre"])
    assert pre[-1] == 11
    for it in range(13):
        A("s_barrier")
        if st == 2 and it < 11:
            stamp(A, it + 1, 1)
        if it - 2 in pre:
            uread(pre.index(it - 2), 0, 0)
            uread(pre.index(it - 2), 1, 0)
        if it in pre:
            unit(pre.index(it), 0)
        issue(it + 3)
        V.need(("C", it + 2))
        if it - 2 in pre:
            A("s_waitcnt lgkmcnt(0)")
    A("s_barrier")
    if cfg["lprio"]:
        A(f"s_setprio {cfg['lprio']}")
    n0 = len(pre) - 1
    uread(n0, 0, 0)
    uread(n0, 1, 0)
    publish(0)
    for k in range(1, 4):
        unit(n0 + k, k)
    uaddr(4, 54, 0)
    uaddr(8, 59, 0)
    V.need(("C", 15))
    A("s_waitcnt lgkmcnt(0)")
    A("s_barrier")
    stamp(A, 3, st)
    for k in range(4, 7):
        unit(n0 + k, k)
    A("s_barrier")
    tail(n0 + 1)
    retry = []
    A("L_hpoll:")
    stamp(A, 4, st)
    stamp(A, 7, st)
    A("s_waitcnt lgkmcnt(0)")

    ACC, BB, NB = 4, 16, 4
    Q = []
    quad = lambda p, j: ACC + 4 * ((2 * p + j) % 3)

    def bread(n):
        p, k = divmod(n, 28)
        b, u = BB + 4 * (n % NB), k % 14
        if u == 0 and p in (1, 5):
            A(f"v_add_u32 v{k // 14}, s{39 + k // 14}, v{k // 14}")
        off = 1024 * u if SLOT[p % 4] == 3 else 8192 * SLOT[p % 4] + 24576 * (u >= 7) + 1024 * (u % 7)
        A(f"ds_read_b128 v[{b}:{b+3}], v{k // 14} offset:{off}")
        if u == 13 and p in (1, 5):
            A(f"v_subrev_u32 v{k // 14}, s{39 + k // 14}, v{k // 14}")
        Q.append(n)

    def bneed(n):
        idx = Q.index(n)
        A(f"s_waitcnt lgkmcnt({len(Q) - 1 - idx})")
        del Q[:idx + 1]

    def dump(r, off):
        A(f"ds_write_b128 v2, v[{r}:{r+3}] offset:{off}")
        Q.append("d")

    stamp(A, 8, st)
    A("s_barrier")
    stamp(A, 5, st)
    if st == 3: stamp(A, 8, 1)
    if st:
        A("s_waitcnt lgkmcnt(0)")
    for n in range(NB):
        bread(n)
    for n in range(224):
        p, k = divmod(n, 28)
        b = BB + 4 * (n % NB)
        qa, qb = quad(p - 1, 0), quad(p - 1, 1)
        ex = {}
        if 1 <= p <= 6:
            sb = 36 + ((p - 1) >> 1)
            ex = {(0, 0): [f"v_cvt_pk_bf16_f32 v2, v{qa}, v{qa+1}", f"v_cvt_pk_bf16_f32 v3, v{qa+2}, v{qa+3}"],
                  (1, 0): [f"v_cvt_pk_bf16_f32 v{qb+3}, v{qb+2}, v{qb+3}", f"v_cvt_pk_bf16_f32 v{qb+2}, v{qb}, v{qb+1}",
                           f"v_mov_b32 v{qb}, v2"],
                  (1, 1): [f"v_mov_b32 v{qb+1}, v3"],
                  (2, 1): [f"buffer_store_dwordx4 v[{qb}:{qb+3}], v1, s[16:19], s{sb} offen sc1"],
                  (3, 0): [f"s_add_u32 s{sb}, s{sb}, 4096"]}
            if p >= 1 + 2 * cfg["nf"]:
                ex[(1, 0)][2] = f"v_min_u32 v{qb}, -2, v2"
                ex[(1, 1)] = [f"v_min_u32 v{qb+1}, -2, v3"]
                ex[(2, 0)] = [f"v_min_u32 v{qb+2}, -2, v{qb+2}", f"v_min_u32 v{qb+3}, -2, v{qb+3}"]
            if cfg.get("nosend"):
                del ex[(2, 1)]
            if p == 6:
                ex[(5, 0)] = ["v_add_u32 v2, s41, v1"]
        if p in (3, 5)[:cfg["nf"]]:
            ex[(5, 1)] = [f"s_waitcnt vmcnt({int(p < 7)})", f"buffer_store_dword v1, off, s[16:19], s{91 + (p >> 1)} sc1"]
        ex[(27, 0)] = ["s_nop 2"]
        if p in cfg["wb"]:
            ex[(12, 0)] = ["s_lshl_b32 s52, s30, 3", "s_add_u32 s52, s52, s28"]
            ex[(12, 1)] = [f"s_cmp_lg_u32 s52, {8 * cfg['wbw'] + 4}", f"s_cbranch_scc1 L_nowb{p}", "buffer_wbl2 sc1", f"L_nowb{p}:"]
        bneed(n)
        if k == 0 and p > 0:
            A("s_nop 0")
        if p > 0 and k == (6 if p == 7 else cfg["zs"]):
            assert "d" not in Q
            if st == 3: stamp(A, p, 1)
            A("s_barrier")
        for j in range(2):
            a = AB + 16 * (k % 14) + 8 * (k // 14) + 4 * j
            c = f"v[{quad(p,j)}:{quad(p,j)+3}]"
            A(f"v_mfma_f32_16x16x32_bf16 {c}, v[{a}:{a+3}], v[{b}:{b+3}], {'0' if k == 0 else c}")
            if p == 7 and j == 0 and k < 2:
                dump((qa, qb)[k], 1024 * k)
            if j == 1 and n + NB < 224:
                if n + NB == 28:
                    A("s_barrier")
                bread(n + NB)
            for e in ex.get((k, j), []):
                A(e)
    A("s_nop 3")
    dump(quad(7, 0), 8192)
    A("s_nop 2")
    dump(quad(7, 1), 8192 + 1024)
    A("s_waitcnt lgkmcnt(0)")
    stamp(A, 9, st)
    A("s_barrier")
    stamp(A, 6, st)
    if st:
        A(f"s_sub_u32 s94, {SPIN}, s51")
    dump_stamps(A, 12, st)
    A("s_endpgm")

    for fn in retry:
        fn()
    A("L_lidle:")
    V.q = []
    ringbase()
    setup2()
    stamp(A, 1, st)
    publish(0)
    A("s_waitcnt lgkmcnt(0)")
    A("s_barrier")
    for u in range(6):
        unit(u, u + 1)
    uaddr(4, 54, 0)
    uaddr(8, 59, 0)
    stamp(A, 2, st)
    stamp(A, 3, st)
    tail(0)
    A("s_branch L_hpoll")


DEF = dict(wp=(2,), wn=4, cf=1, rsl=1, tb=2, nf=1, tn=4, tm=1, pm=0, pt=5, ps=1, hoist=0, ep=5, pre=(11,), otch=0, rot1=4, look=1, own=1, xrot=1, pro=2, nu=0, prio=0, hfl='sc1', sfl='', arr=2, fdel=2, cout=12, psl=2, it=1, cx=1, zs=8, ofl='nt', wb=(), wbw=31, bat=2, lprio=0)


def gen(st=False, **kw):
    cfg = dict(DEF, **kw)
    A = Asm()
    A(HDR.rstrip("\n"))
    A(header([(KNAME, 256, 512, LDS)]).rstrip("\n"))
    A(kstart(KNAME))
    A("s_cmp_ge_u32 s2, 256")
    A("s_cbranch_scc1 L_end")
    if st:
        A("s_memrealtime s[88:89]")
    stamp(A, 0, st)
    A("s_load_dwordx8 s[36:43], s[0:1], 0")
    A("s_load_dwordx4 s[44:47], s[0:1], 32")
    A("s_load_dwordx2 s[48:49], s[0:1], 48")
    A("v_lshrrev_b32 v1, 6, v0")
    A("v_and_b32 v0, 63, v0")
    if cfg.get("perm"):
        A("s_lshr_b32 s29, s2, 5")
        A("s_and_b32 s30, s2, 31")
        A("s_lshl_b32 s2, s30, 3")
        A("s_add_u32 s2, s2, s29")
    else:
        A("s_and_b32 s29, s2, 7")
        A("s_lshr_b32 s30, s2, 3")
    A("v_readfirstlane_b32 s28, v1")
    A("s_lshr_b32 s25, s29, 1")
    A("s_and_b32 s33, s29, 1")
    A("s_cmp_ge_u32 s30, 14")
    A("s_cselect_b32 s99, 14, 0")
    A("s_addc_u32 s31, s33, s33")
    A("s_sub_u32 s99, s30, s99")
    A("s_mul_i32 s32, s25, 14")
    A("s_add_u32 s32, s32, s99")
    A("s_cmp_lt_u32 s28, 4")
    A("s_cbranch_scc1 L_comp")
    loader_waves(A, st, cfg)
    A("L_comp:")
    scalars2(A, cfg)
    compute_waves(A, st, cfg)
    A("L_end:")
    A("s_endpgm")
    A(rodata([kdesc(KNAME, 256, 102, 256)]))
    return A.text()
```
